```python
import torch

def _softmax(x, axis=-1):
    return torch.softmax(x, dim=axis)

def _gelu(x):
    return torch.nn.functional.gelu(x, approximate='tanh')

def _silu(x):
    return torch.nn.functional.silu(x)

def _sigmoid(x):
    return torch.sigmoid(x)

def _layernorm(x, axis=-1, eps=1e-05):
    m = x.mean(dim=axis, keepdim=True)
    v = x.var(dim=axis, keepdim=True, unbiased=False)
    return (x - m) / torch.sqrt(v + eps)

def _scatter_add(tgt, idx, src, axis=0):
    return tgt.clone().index_add_(axis, idx, src)

def _segment_sum(src, seg, n):
    out = torch.zeros((n,) + src.shape[1:], dtype=src.dtype)
    return out.index_add_(0, seg, src)

def _pad(x, pw):
    flat = tuple((v for pair in reversed(pw) for v in pair))
    return torch.nn.functional.pad(x, flat)
kernel_name = 'standalone__window_attn_davit__vision'

def setup_inputs():

    _w = lambda a: (lambda t: t.to(torch.bfloat16) if t.is_floating_point() else t)(torch.as_tensor(a))
    HW = 512
    C0 = 192
    ws = 7
    nh = 4
    H = W = max(HW // ws * ws, ws)
    C = max(C0 // nh * nh, nh)
    k = 3
    return {'x': _w((lambda *s: torch.randn(*s, dtype=torch.bfloat16) * 1.6)(1, H, W, C)), 'dw_pe': _w((lambda *s: torch.randn(*s, dtype=torch.bfloat16) * 1.6)(k, k, C) * 0.1), 'w_qkv': _w((lambda *s: torch.randn(*s, dtype=torch.bfloat16) * 1.6)(C, 3 * C) * C ** (-0.5)), 'w_o': _w((lambda *s: torch.randn(*s, dtype=torch.bfloat16) * 0.4)(C, C) * C ** (-0.5))}

def reference(x, dw_pe, w_qkv, w_o):
    B, H, W, C = x.shape
    ws = 7
    nh = 4
    dh = C // nh
    kk = dw_pe.shape[0]
    pad = kk // 2
    xp = _pad(x, ((0, 0), (pad, pad), (pad, pad), (0, 0)))
    pe = torch.zeros_like(x)
    for i in range(kk):
        for j in range(kk):
            pe = pe + xp[:, i:i + H, j:j + W, :] * dw_pe[i, j][None, None, None, :]
    x0 = x + pe
    h = _layernorm(x0, axis=-1)
    hw = h.reshape(B, H // ws, ws, W // ws, ws, C)
    hw = (lambda x, *d: x.permute(*d))(hw, 0, 1, 3, 2, 4, 5)
    hw = hw.reshape(-1, ws * ws, C)
    qkv = (hw @ w_qkv).reshape(-1, ws * ws, 3, nh, dh)
    q = qkv[:, :, 0].clone()
    k = qkv[:, :, 1].clone()
    v = qkv[:, :, 2].clone()
    scale = dh ** (-0.5)
    attn = torch.einsum('wnhd,wmhd->whnm', q, k) * scale
    attn = _softmax(attn, axis=-1)
    out = torch.einsum('whnm,wmhd->wnhd', attn, v)
    out = out.reshape(-1, ws * ws, C) @ w_o
    out = out.reshape(B, H // ws, W // ws, ws, ws, C)
    out = (lambda x, *d: x.permute(*d))(out, 0, 1, 3, 2, 4, 5)
    out = out.reshape(B, H, W, C)
    return x0 + out
```

```python
import re, heapq
from collections import defaultdict

def rng(prefix, a, n):
    return [f"{prefix}{a+i}" for i in range(n)]
def V(a, n=1): return ('v', a, n)
def A(a, n=1): return ('a', a, n)
def S(a, n=1): return ('s', a, n)
def txt(r):
    if isinstance(r, tuple):
        p, a, n = r
        return f"{p}{a}" if n == 1 else f"{p}[{a}:{a+n-1}]"
    return str(r)
def regs(r):
    if isinstance(r, tuple):
        return rng(r[0], r[1], r[2])
    if r in ('vcc', 'm0', 'exec', 'scc'): return [r]
    return []
def sub(r, off, n=1): return (r[0], r[1]+off, n)

class I:
    __slots__ = ('text','kind','rd','wr','mc','cost','cnt','uid','win','prio','lds','trans','perm','preds','succs','idx','t','arr','npred','early','wide','tag','ta','lb','vlat')
    def __init__(s, text, kind, rd=(), wr=(), mc=(), cost=1, cnt=None, lds=0, trans=False, perm=False, wide=()):
        s.text=text; s.kind=kind; s.rd=list(rd); s.wr=list(wr); s.mc=list(mc); s.cost=cost; s.cnt=cnt
        s.lds=lds; s.trans=trans; s.perm=perm; s.uid=None; s.win=None; s.prio=0.0; s.early=None; s.wide=list(wide); s.tag=''; s.ta=16; s.vlat=None
    def __repr__(s): return f"<{s.kind} {s.text}>"

TRANS = ('v_exp_f32','v_rcp_f32','v_rsq_f32','v_log_f32','v_sqrt_f32')
class Prog:
    def __init__(s):
        s.ins=[]
    def add(s, i): s.ins.append(i); return i
    def mfma(s, d, a, b, c, k=32):
        op = {32:'v_mfma_f32_16x16x32_bf16', 16:'v_mfma_f32_16x16x16_bf16'}[k]
        return s.add(I(f"{op} {txt(d)}, {txt(a)}, {txt(b)}, {txt(c)}", 'M', regs(a)+regs(b)+regs(c), regs(d), mc=regs(c)))
    def smfmac(s, d, a, b, idx):
        return s.add(I(f"v_smfmac_f32_16x16x64_bf16 {txt(d)}, {txt(a)}, {txt(b)}, {txt(idx)}", 'M', regs(a)+regs(b)+regs(idx)+regs(d), regs(d), mc=regs(d)))
    def v(s, op, d, *src, rmw=False, extra='', rd=(), wr=()):
        r=[]; t=[]
        for x in src:
            if isinstance(x, tuple) and x[0]=='neg':
                r+=regs(x[1]); t.append('-'+txt(x[1]))
            else:
                r+=regs(x); t.append(txt(x))
        if rmw: r+=regs(d)
        base=op.replace('_e32','').replace('_e64','')
        tr = base in TRANS
        return s.add(I(f"{op} {txt(d)}, {', '.join(t)}{extra}", 'V', r+list(rd)+['exec'], regs(d)+list(wr), cost=2 if tr else 1, trans=tr))
    def swap(s, n, a, b):
        return s.add(I(f"v_permlane{n}_swap_b32 {txt(a)}, {txt(b)}", 'V', regs(a)+regs(b)+['exec'], regs(a)+regs(b), cost=2, perm=True))
    def dsr(s, op, d, addr, off=0, rd=(), wr=(), lds=None):
        if lds is None: lds={'ds_read_b128':4,'ds_read_b64':2,'ds_read_b32':2,'ds_read_u16':2,'ds_read_b64_tr_b16':2}[op]
        assert 0<=off<65536, off
        o=f" offset:{off}" if off else ""
        return s.add(I(f"{op} {txt(d)}, {txt(addr)}{o}", 'R', regs(addr)+list(rd)+['exec'], regs(d)+list(wr), cnt='lgkm', lds=lds))
    def dsw(s, op, addr, data, off=0, rd=(), wr=()):
        n=data[2]; lds={1:4,2:7,4:13}[n]
        assert 0<=off<65536, off
        o=f" offset:{off}" if off else ""
        return s.add(I(f"{op} {txt(addr)}, {txt(data)}{o}", 'W', regs(addr)+regs(data)+list(rd)+['exec'], list(wr), cost=n+1, cnt='lgkm', lds=lds))
    def bload(s, op, d, voff, srd, soff, off=0, flags='', rd=(), wr=()):
        assert 0<=off<4096
        o=f" offset:{off}" if off else ""
        return s.add(I(f"{op} {txt(d)}, {txt(voff)}, {txt(srd)}, {txt(soff)} offen{o}{flags}", 'G', regs(voff)+regs(srd)+regs(soff)+list(rd)+['exec'], regs(d)+list(wr), cost=2, cnt='vm'))
    def dma(s, voff, srd, soff, flags='', rd=(), wr=()):
        return s.add(I(f"buffer_load_dwordx4 {txt(voff)}, {txt(srd)}, {txt(soff)} offen{flags} lds", 'G', regs(voff)+regs(srd)+regs(soff)+['m0']+list(rd)+['exec'], list(wr), cost=2, cnt='vm', lds=8))
    def bstore(s, op, data, voff, srd, soff, off=0, flags='', rd=(), wr=()):
        assert 0<=off<4096
        o=f" offset:{off}" if off else ""
        n=data[2]
        return s.add(I(f"{op} {txt(data)}, {txt(voff)}, {txt(srd)}, {txt(soff)} offen{o}{flags}", 'G', regs(voff)+regs(srd)+regs(soff)+regs(data)+list(rd)+['exec'], list(wr), cost=2 if n<=2 else 4, cnt='vm', wide=regs(data) if n>2 else ()))
    def s(s_, op, d, *src, scc_w=None, scc_r=False, rd=(), wr=()):
        r=[]
        for x in src: r+=regs(x)
        w=regs(d) if d is not None else []
        if scc_w is None:
            scc_w = op.split('_')[1] in ('add','sub','addc','subb','lshl','lshr','and','or','xor','cmp','min','max','andn2','bfe','ashr','cmpk','addk')
        if op.startswith('s_cselect') or op.startswith('s_addc') or op.startswith('s_subb'): scc_r=True
        if scc_w: w=w+['scc']
        if scc_r: r=r+['scc']
        ops=([txt(d)] if d is not None else [])+[txt(x) for x in src]
        return s_.add(I(f"{op} {', '.join(ops)}", 's', r+list(rd), w+list(wr)))
    def barrier(s, rd=(), wr=()):
        return s.add(I("s_barrier", 'B', list(rd)+['p:bar'], list(wr)+['p:bar']))
    def fuse(s, n):
        L=s.ins[-n:]; del s.ins[-n:]
        x=L[-1]; rd=[]; wr=[]
        for i in L:
            rd+=[r for r in i.rd if r not in wr and r not in rd]; wr+=[r for r in i.wr if r not in wr]
        assert 'm0' not in rd and 'scc' not in rd
        x.text="\n".join(i.text for i in L); x.rd=rd; x.wr=[r for r in wr if r not in ('m0','scc')]; x.cost=sum(i.cost for i in L)
        s.ins.append(x); return x
    def raw(s, text, rd=(), wr=(), kind='s', cnt=None):
        return s.add(I(text, kind, rd, wr, cnt=cnt))

def build_deps(ins):
    lastw={}; readers=defaultdict(list)
    for n,i in enumerate(ins):
        i.preds={}; i.succs=[]
    for n,i in enumerate(ins):
        for r in i.rd:
            if r in lastw: i.preds.setdefault(lastw[r], set()).add(('raw', r))
        for r in i.wr:
            if r in lastw and lastw[r] is not i: i.preds.setdefault(lastw[r], set()).add(('waw', r))
            for p in readers[r]:
                if p is not i: i.preds.setdefault(p, set()).add(('war', r))
        for r in i.rd: readers[r].append(i)
        for r in i.wr:
            lastw[r]=i; readers[r]=[]
    for i in ins:
        for p in i.preds: p.succs.append(i)

def isreg(r): return not r.startswith('p:')

def hazard(p, c, deps):
    w=0
    for ty,r in deps:
        if not isreg(r): continue
        if p.kind=='M':
            if ty=='raw':
                if c.kind=='M':
                    if r in c.mc and c.mc==p.wr and not (r in c.rd[:len(c.rd)-len(c.mc)]) and c.text.split()[0]==p.text.split()[0]: w=max(w,0)
                    elif r in c.mc: w=max(w,6)
                    else: w=max(w,8)
                else: w=max(w,8)
            elif ty=='waw':
                if c.kind=='M':
                    w=max(w, 0 if c.wr==p.wr else 6)
                else: w=max(w,8)
            elif ty=='war':
                if r in p.mc and c.kind!='M': w=max(w,3)
        elif p.kind=='V':
            if ty=='raw':
                if c.kind=='M': w=max(w,2 if r!='exec' else 4)
                elif c.kind=='V':
                    if r[0]=='s' or r=='vcc': w=max(w,2)
                    if c.perm or 'dpp' in c.text: w=max(w,2)
                    if p.trans and not c.trans: w=max(w,1)
                    if 'readfirstlane' in c.text or 'readlane' in c.text: w=max(w,1)
                elif c.kind=='G':
                    if r[0]=='s': w=max(w,5)
                    if p.trans: w=max(w,1)
                elif c.kind in 'RW':
                    if p.trans: w=max(w,1)
                elif c.kind=='s':
                    w=max(w,1)
        elif p.kind=='s':
            if ty=='raw' and r=='m0': w=max(w,1)
        elif p.kind=='G':
            if ty=='war' and r in p.wide: w=max(w,2)
    return w

def needs_wait(p, deps):
    if p.cnt is None: return False
    for ty,r in deps:
        if ty in ('raw','waw') and not r.startswith('p:o:') and r[0]!='s': return True
    return False

LAT_LDS=16; LAT_VM=400; MARGIN=4
class Model:
    def __init__(s):
        s.t=0; s.lastM=-99; s.lastV=-99; s.ldsfree=0; s.wfree=0; s.tafree=0; s.mblock=0; s.vmarr=0
    def earliest(s, i):
        t=s.t
        if i.kind=='M': t=max(t, s.lastM+4, s.mblock)
        elif i.kind=='V': t=max(t, s.lastM+2)
        elif i.kind in 'RW': t=max(t, s.lastM+2, s.lastV+2, s.wfree, s.ldsfree-12)
        elif i.kind=='G': t=max(t, s.lastM+2, s.lastV+2, s.tafree-(64 if i.ta<=16 else 40))
        return t
    def issue(s, i, t):
        i.t=t
        if i.kind=='M': s.lastM=t; i.arr=t+9
        s.t=t+i.cost
        if i.kind=='V': s.lastV=s.t; i.arr=s.t
        if i.kind in 'sBX': i.arr=s.t
        if i.kind in 'RW':
            st=max(t, s.ldsfree); s.ldsfree=st+i.lds; i.arr=s.ldsfree+LAT_LDS
            if i.kind=='W': s.wfree=t+i.lds
        if i.kind=='G':
            s.tafree=max(t,s.tafree)+i.ta
            i.arr=max(s.tafree+(LAT_VM if i.vlat is None else i.vlat), s.vmarr); s.vmarr=i.arr
            if 'store' in i.text: s.mblock=t+i.cost+1
        if i.kind=='B': s.t+=3

def schedule(ins, window=2000, mempref=60, oldthr=40, edf=1.0, rslack=8, vw=2):
    build_deps(ins)
    if edf:
        ms=sorted([i for i in ins if i.kind=='M'], key=lambda i:i.prio)
        for k,i in enumerate(ms): i.prio=k*4*edf
        last=len(ms)*4*edf
        for i in reversed(ins):
            if i.kind=='M': continue
            dl=last+50
            for sx in i.succs:
                d=sx.preds[i]
                if needs_wait(i,d): lat=(i.lds+LAT_LDS+MARGIN+rslack) if i.cnt=='lgkm' else ((LAT_VM if i.vlat is None else i.vlat)+i.ta)
                else: lat=max(hazard(i,sx,d)+1, vw*i.cost if i.kind!='s' else 4)
                if i.kind=='G' and sx.kind=='G': lat=max(lat,i.ta)
                dl=min(dl,sx.prio-lat)
            i.prio=dl
    for i in ins:
        i.npred=len(i.preds); i.idx=None
    hz={}
    def prep(i):
        hz[id(i)]=[(p,hazard(p,i,d),needs_wait(p,d)) for p,d in i.preds.items()]
    ready=[i for i in ins if i.npred==0]
    for i in ready: prep(i)
    out=[]; m=Model(); n=0
    covered={'lgkm':-1,'vm':-1}
    pend={'lgkm':[], 'vm':[]}
    while ready:
        cand=[]
        pm=min(i.prio for i in ready)
        nl=sum(1 for x in pend['lgkm'] if x.idx>covered['lgkm'])
        for i in ready:
            if i.prio>pm+window: continue
            e=m.earliest(i); wait=False
            if i.early is not None: e=max(e,i.early)
            for p,h,w in hz[id(i)]:
                if h and p.t+h+1>e: e=p.t+h+1
                if w and p.idx>covered[p.cnt]:
                    wait=True
                    if p.arr+MARGIN>e: e=p.arr+MARGIN
            if i.cnt=='lgkm' and nl>=13: e=max(e, m.t+3)
            cand.append((i,e,wait))
        now=[c for c in cand if c[1]<=m.t]
        inshadow = (m.t==m.lastM+1)
        pick=None
        if inshadow:
            want=[c for c in cand if c[2] and c[1]<=m.t+3]
            sc=[c for c in now if c[0].kind in 'sB' and not c[2]]
            if sc and not (want and min(c[0].prio for c in want)<min(c[0].prio for c in sc)+200): pick=min(sc,key=lambda c:c[0].prio)
            else:
                for c_ in pend:
                    for x in pend[c_]:
                        if x.arr<=m.t and x.idx>covered[c_]: covered[c_]=x.idx
                    pend[c_]=[x for x in pend[c_] if x.idx>covered[c_]]
                m.t+=1
                continue
        else:
            ms=[c for c in now if c[0].kind=='M']
            if ms: pick=min(ms,key=lambda c:(c[0].prio+(30 if c[2] else 0)))
            else:
                nons=[c for c in now if c[0].kind not in 'sB']
                key=lambda c:c[0].prio+(30 if c[2] else 0)
                mem=[c for c in nons if c[0].kind in 'RWG']
                if mem and (not [c for c in nons if c[0].kind=='V'] or min(map(key,mem)) < min(map(key,nons))+mempref):
                    pick=min(mem,key=key)
                elif nons:
                    pick=min(nons,key=key)
                    if pick[0].cost>1 and m.t+1==m.lastM+4 and any(c[0].kind=='M' and c[1]<=m.t+1 for c in cand):
                        one=[c for c in nons if c[0].cost==1 and not c[2]]
                        if one: pick=min(one,key=key)
                    old=[c for c in cand if c[0].kind in 'RWGsB' and c[1]<=m.t+2 and c[0].prio<pick[0].prio-oldthr]
                    if old and not any(c[0].kind=='M' and c[1]<=m.t+3 for c in cand): pick=min(old,key=lambda c:c[0].prio)
                elif now: pick=min(now,key=lambda c:c[0].prio)
                else:
                    for c_ in pend:
                        for x in pend[c_]:
                            if x.arr<=m.t and x.idx>covered[c_]: covered[c_]=x.idx
                        pend[c_]=[x for x in pend[c_] if x.idx>covered[c_]]
                    m.t+=1
                    continue
        i,e,wait=pick
        if wait:
            for p,h,w in hz[id(i)]:
                if w and p.idx>covered[p.cnt]: covered[p.cnt]=p.idx
            m.t+=1
        m.t=max(m.t,e)
        m.issue(i,m.t); i.idx=n; n+=1; out.append(i)
        if i.cnt: pend[i.cnt].append(i)
        ready.remove(i)
        for sx in i.succs:
            sx.npred-=1
            if sx.npred==0: ready.append(sx); prep(sx)
    assert len(out)==len(ins), (len(out), len(ins))
    return out

def check_order(ref, order):
    build_deps(ref)
    pos={id(i):n for n,i in enumerate(order)}
    assert len(pos)==len(ref)
    bad=0
    for i in ref:
        for p in i.preds:
            if pos[id(p)]>pos[id(i)]:
                bad+=1
                if bad<5: print("ORDER VIOLATION", p.uid, p.win, p.text, '->', i.uid, i.win, i.text, i.preds[p])
    return bad==0

MAXCNT={'lgkm':15,'vm':63}
def finalize(order, lookback=40):
    out=[]; m=Model()
    seq={'lgkm':0,'vm':0}; myseq={}; ops={'lgkm':[], 'vm':[]}
    covered={'lgkm':-1,'vm':-1}
    slots=[]
    def mkwait(t):
        w=I(None,'s'); w.preds={}; w.tag='wait'; w.early={}; w.t=t; w.idx=dict(seq); return w
    prev=None
    for k,i in enumerate(order):
        if i.kind=='X':
            i.t=m.t; out.append(i); slots=[]; prev=i; continue
        e=m.earliest(i)
        if e>m.t and i.kind not in 'sB':
            w=mkwait(e-1); out.append(w); slots.append(w)
        for c in ('lgkm','vm'):
            need=-1
            for p,d in i.preds.items():
                if p.cnt==c and needs_wait(p,d) and myseq[id(p)]>need: need=myseq[id(p)]
            if need>covered[c]:
                arr=max(x.arr for x in ops[c][covered[c]+1:need+1])
                place=None
                if slots and slots[-1].idx[c]>need and (slots[-1].t>=arr or out[-1] is slots[-1]) and m.t-slots[-1].t<lookback: place=slots[-1]
                if place is None:
                    place=mkwait(m.t); out.append(place); slots.append(place); m.t+=1
                if out[-1] is place and arr>place.t:
                    place.t=arr; m.t=max(m.t,arr+1)
                place.early[c]=max(place.early.get(c,-1),need)
                covered[c]=need
        e=m.earliest(i)
        for p,d in i.preds.items():
            h=hazard(p,i,d)
            if h and p.t+h+1>e: e=p.t+h+1
        m.issue(i,e); out.append(i)
        if i.cnt:
            myseq[id(i)]=seq[i.cnt]; seq[i.cnt]+=1; ops[i.cnt].append(i)
        prev=i
    res=[]
    def short(p,i,h):
        t=1; lastM=0 if p.kind=='M' else -99; tv=0
        for x in res[p.lb+1:p.lb+2+h+4]:
            if x.kind=='X': continue
            if x.kind=='M': t=max(t,lastM+4,tv); lastM=t
            elif x.kind in 'VRWG': t=max(t,lastM+2,tv)
            if x.kind=='V': tv=t+x.cost
            t+= x.cost if x.tag=='nop' else 1
            if t>h: return 0
        ti=t
        if i.kind=='M': ti=max(t,lastM+4,tv)
        elif i.kind in 'VRWG': ti=max(t,lastM+2,tv)
        return 0 if ti>h else h+1-t
    for i in out:
        if i.tag=='wait':
            if not i.early: continue
            parts=[]
            for c,name in (('vm','vmcnt'),('lgkm','lgkmcnt')):
                if c in i.early:
                    nn=i.idx[c]-1-i.early[c]; assert nn>=0
                    parts.append(f"{name}({min(nn,MAXCNT[c]-1)})")
            i.text="s_waitcnt "+" ".join(parts)
        if i.kind=='X': res.append(i); continue
        hzn=0
        for p,d in i.preds.items():
            h=hazard(p,i,d)
            if h: hzn=max(hzn,short(p,i,h))
        if hzn:
            w=I(f"s_nop {hzn-1}",'s',cost=hzn); w.preds={}; w.tag='nop'; w.t=i.t-hzn
            res.append(w)
        i.lb=len(res); res.append(i)
    return res, m.t
```

```python
import sys, os, struct
from asmlib import *

NAME="standalone__window_attn_davit__vision"
ROW=196224; PIX=384; NB=100270464; NWIN=21
OOB=0x70000000
XROW=257*16; XPIX=25*16
L_X=0
L_H=[37120, 37120+18432]
L_O=L_H[1]+18432
L_ST=L_O+18432
L_BC=L_O
L_LS=L_ST+2048
LS_SLOT=1408
L_CA=L_LS+49152
L_FLAG=L_CA+19008
L_END=L_FLAG+64
LDS_BYTES=163840
assert L_END<=LDS_BYTES
FB=L_H[0]
X0=[0,36]
Q0,K0,Q1,Q2,K1,K2,KL=72,78,84,90,96,102,108
QP=[Q0,Q1,Q2]; KP=[K0,K1,K2,KL]
VP=114
ACC=138
PP=174
HF=182
ONES=190
a=194
CVA=a; a+=9
STA=a; a+=3
MASK=a; a+=1
assert MASK%2==0
MASK2=a; a+=1
DMF=a; a+=1
SWA=a; a+=1
FRA=a; a+=1
FW1=a; a+=1
FW2=a; a+=1
IDX=a; a+=1
PWA=a; a+=1
LQA=a; a+=1
LVA=a; a+=1
CAA=a; a+=1
CHK=a; a+=1
BRA=a; a+=1
XT=a; a+=4
assert a==224, a
DMV=PP+6
PL=Q1
def Wk(dt,k): return A(0+4*(dt*6+k),4)
def Wv(dt,k): return A(72+4*(dt*6+k),4)
def Wo(dt,k): return A(144+4*(dt*6+k),4)
def Wq(dt,k):
    n=dt*6+k
    return A(216+4*n,4) if n<10 else V(224+4*(n-10),4)
SRX=S(4,4); SRO=S(8,4); SRW=S(12,4); SRWO=S(16,4); SRDW=S(20,4); SRWS=S(24,4)
sW=S(32); sW0=S(33); sEND=S(34); sWID=S(35); sB=[S(36),S(37)]; sO=[S(38),S(39)]
sOFF=S(40); sT0=S(41); sT1=S(42); sT2=S(43); sMSK=S(44); sM0=S(45); sCNT=S(46); sMODE=S(47)
sINV=S(48); sEPS=S(49); sWSO=S(50); sT3=S(51); sPF=S(52); sWG=S(53); sMK0=S(72); sINV2=S(73); sRA=S(3)

LEFT=(4,2)
EVEN_L=[0,1,2,3,12,13,14,15]; ODD_L=[4,5,6,7,8,9,10,11]
def token_map():
    cls={}
    for c in range(7):
        for r in range(7):
            if (r,c)!=LEFT: cls.setdefault((r+9*c)%16,[]).append((r,c))
    tok=[[None]*16 for _ in range(3)]
    for res,lst in cls.items():
        assert len(lst)==3
        lst=sorted(lst)
        lane=(EVEN_L if res%2==0 else ODD_L)[res//2]
        for t in range(3): tok[t][lane]=lst[t]
    return tok
TOK=token_map()
CORN=[(0,0),(0,2),(2,0),(2,2)]; EDGE=[(0,1),(1,0),(1,2),(2,1)]

class Gen(Prog):
    def __init__(s, cfg):
        super().__init__(); s.cfg=cfg; s.unit=None; s.cnt=0
    def begin(s, name, body, t0, t1):
        s.flush(); s.unit=(name, body, t0, t1, len(s.ins))
    def flush(s):
        if s.unit is None: return
        name,body,t0,t1,st=s.unit
        n=len(s.ins)-st
        for k,i in enumerate(s.ins[st:]):
            i.uid=(name,k); i.win=body
            i.prio=body*s.cfg['period']+t0+(t1-t0)*k/max(1,n-1)
            if i.kind=='R': i.prio-=s.cfg.get('rlead',40)
        s.unit=None

    def u_dma(g, i, body, t0, t1, fused=False):
        p=i&1
        g.begin('DMA',body,t0,t1)
        g.s('s_mul_hi_u32', sT0, sWID, 58835169)
        g.s('s_mul_i32', sT1, sT0, 73)
        g.s('s_sub_u32', sT1, sWID, sT1)
        g.s('s_mul_i32', sT2, sT0, 7*ROW)
        g.s('s_mul_i32', sT3, sT1, 7*PIX)
        g.s('s_add_u32', sT2, sT2, sT3)
        g.s('s_cmp_lt_u32', None, sWID, sEND)
        g.s('s_cselect_b32', sB[p], sT2, OOB)
        g.s('s_add_u32', sWID, sWID, 32)
        g.s('s_cmp_eq_u32', None, sT1, 0)
        g.s('s_cselect_b32', sMSK, 0x1fffffff, sMK0)
        g.s('s_cmp_eq_u32', None, sT1, 72)
        g.s('s_cselect_b32', sMSK, 0x37ffffff, sMSK)
        g.s('s_cmp_eq_u32', None, sT0, 0)
        g.s('s_cselect_b32', sOFF, OOB, sB[p])
        if fused: g.fuse(15)
        g.v('v_and_b32', V(DMV), sMSK, V(DMF))
        for R in range(9):
            g.s('s_add_u32', 'm0', sM0, R*XROW)
            if R>0: g.s('s_add_u32', sOFF, sB[p], R*ROW)
            elif fused: g.raw('s_nop 0')
            g.dma(V(DMV), SRX, sOFF, flags=g.cfg['ldflags'], rd=['p:Xfree'], wr=[f'p:Xw{R}'])
            if fused: g.fuse(3)
        g.flush()

    def conv_tile(g, c, t, kind, abuf, bbuf, x0, load):
        d=V(x0+12*t+4*c,4)
        if kind==0:
            load(V(bbuf,4), 2, t, c*32)
            g.mfma(d, V(abuf,4), V(bbuf,4), 0)
        else:
            load(V(bbuf,4), kind-1, t, c*32)
            load(V(bbuf+4,4), kind-1, t, c*32+16)
            g.smfmac(d, V(abuf,4), V(bbuf,8), V(IDX))

    def u_conv(g, i, body, t0, t1):
        p=i&1
        g.begin('CONV',body,t0,t1)
        def load(d, pat, t, off): g.dsr('ds_read_b128', d, V(CVA+3*pat+t), off, rd=['p:Xok'])
        n=0; m=0
        for c in range(3):
            for kind in range(3):
                ab=PP+4*(m&1); m+=1
                g.dsr('ds_read_b128', V(ab,4), V(CAA), (c*3+kind)*528)
                for t in range(3):
                    bb=Q1+8*(n%3); n+=1
                    g.conv_tile(c,t,kind,ab,bb,X0[p],load)
        g.flush()

    def stat_acc(g, x0, c, t, s1, s2):
        b=x0+12*t+4*c
        if c==0:
            g.v('v_add_f32', V(s1), V(b), V(b+1))
            g.v('v_mul_f32', V(s2), V(b), V(b))
            g.v('v_add_f32', V(s1), V(s1), V(b+2))
            g.v('v_fmac_f32', V(s2), V(b+1), V(b+1), rmw=True)
            g.v('v_add_f32', V(s1), V(s1), V(b+3))
            g.v('v_fmac_f32', V(s2), V(b+2), V(b+2), rmw=True)
            g.v('v_fmac_f32', V(s2), V(b+3), V(b+3), rmw=True)
        else:
            for r in range(4):
                g.v('v_add_f32', V(s1), V(s1), V(b+r))
                g.v('v_fmac_f32', V(s2), V(b+r), V(b+r), rmw=True)

    def u_stat(g, i, body, times, ntile=3):
        p=i&1; x0=X0[p]
        sr=[VP+8*t+4 for t in range(3)]
        tmp=[VP+8*t+6 for t in range(3)]
        for c in range(3):
            g.begin(f'STAT{c}',body,*times[c])
            for t in range(ntile): g.stat_acc(x0,c,t,sr[t],sr[t]+1)
        g.begin('STATR',body,*times[3])
        for t in range(ntile):
            g.swap(16, V(sr[t]), V(sr[t]+1))
            g.v('v_add_f32', V(sr[t]), V(sr[t]), V(sr[t]+1))
        g.swap(32, V(sr[0]), V(sr[1]))
        g.v('v_add_f32', V(sr[0]), V(sr[0]), V(sr[1]))
        g.dsw('ds_write_b32', V(SWA), V(sr[0],1), 0, wr=['p:STw0'])
        if ntile==3:
            g.v('v_mov_b32', V(sr[2]+1), V(sr[2]))
            g.swap(32, V(sr[2]), V(sr[2]+1))
            g.v('v_add_f32', V(sr[2]), V(sr[2]), V(sr[2]+1))
            g.dsw('ds_write_b32', V(SWA), V(sr[2],1), 512, wr=['p:STw1'])
        g.flush()

    def u_bs(g, body, t):
        g.begin('BS',body,t,t)
        g.barrier(rd=['p:STw0','p:STw1']+[f'p:Or{t}_{k}' for t in range(3) for k in range(6)], wr=['p:STok','p:Xfree','p:Ofree'])
        g.flush()

    def u_norm(g, i, body, times, ntile=3, hbuf=None):
        p=i&1; x0=X0[p]
        if hbuf is None: hbuf=L_H[p]
        sr=[VP+8*t+4 for t in range(3)]
        g.begin('STATF',body,*times[0])
        SF=K2
        g.dsr('ds_read_b128', V(SF,4), V(FRA), L_ST-FB, rd=['p:STok'])
        g.dsr('ds_read_b128', V(SF+4,4), V(FRA), L_ST-FB+1024, rd=['p:STok'])
        g.v('v_add_f32', V(SF), V(SF), V(SF+1)); g.v('v_add_f32', V(SF+4), V(SF+4), V(SF+5))
        g.v('v_add_f32', V(SF+2), V(SF+2), V(SF+3)); g.v('v_add_f32', V(SF+6), V(SF+6), V(SF+7))
        g.v('v_add_f32', V(SF), V(SF), V(SF+2)); g.v('v_add_f32', V(SF+4), V(SF+4), V(SF+6))
        g.v('v_mul_f32', V(SF+1), sINV, V(SF))
        g.v('v_mul_f32', V(SF+2), sINV2, V(SF))
        g.v('v_mul_f32', V(SF+4), sINV2, V(SF+4))
        g.v('v_fma_f32', V(SF+4), ('neg',V(SF+1)), V(SF+2), V(SF+4))
        g.v('v_max_f32', V(SF+4), 0, V(SF+4))
        g.v('v_add_f32', V(SF+4), sEPS, V(SF+4))
        g.v('v_rsq_f32', V(SF), V(SF+4))
        g.v('v_mul_f32_e64', V(SF+1), ('neg',V(SF+1)), V(SF))
        g.dsw('ds_write_b64', V(FW1), V(SF,2), L_BC-FB, wr=['p:o:BC'])
        for t in range(ntile):
            g.dsr('ds_read_b64', V(sr[t],2), V(BRA), 256*t, rd=['p:o:BC'])
        for t in range(ntile):
            g.begin(f'NORM{t}',body,*times[1+t])
            hp=[Q2,PP][t&1]; ft=XT
            n=0
            for c in range(3):
                for h in range(2):
                    b=x0+12*t+4*c+2*h; f=ft+2*(n%2); n+=1
                    g.v('v_fma_f32', V(f), V(b), V(sr[t]), V(sr[t]+1))
                    g.v('v_fma_f32', V(f+1), V(b+1), V(sr[t]), V(sr[t]+1))
                    g.v('v_cvt_pk_bf16_f32', V(hp+2*c+h), V(f), V(f+1))
                if c==1: g.dsw('ds_write_b128', V(FW1), V(hp,4), hbuf-FB+6144*t, wr=[f'p:Hw{t}a'])
            g.dsw('ds_write_b64', V(FW2), V(hp+4,2), hbuf-FB+6144*t, wr=[f'p:Hw{t}b'])
        g.flush()

    def u_qkv(g, i, body, t0, t1):
        p=i&1
        bd=[0,3/7,6/7,1]
        bd=[t0+(t1-t0)*x for x in bd]
        for t in range(3):
            g.begin(f'QKV{t}',body,bd[t],bd[t+1])
            for k in range(6):
                hb=V(HF+4*(k&1),4)
                g.dsr('ds_read_b128', hb, V(FRA), L_H[p]-FB+6144*t+1024*k, rd=['p:Hok'])
                for n in range(9):
                    if t==2 and n>=3: continue
                    d=V(ACC+4*n,4); c=d if k else 0
                    if n<3: g.mfma(d, Wk(n,k), hb, c)
                    elif n<6: g.mfma(d, Wq(n-3,k), hb, c)
                    else: g.mfma(d, hb, Wv(n-6,k), c)
            e=bd[t+1]
            g.begin(f'QKVC{t}',body,e-60,e-40)
            for n in range(9):
                if t==2 and n>=3: continue
                b=ACC+4*n
                dst = KP[t]+2*n if n<3 else (QP[t]+2*(n-3) if n<6 else VP+8*(n-6)+2*t)
                g.v('v_cvt_pk_bf16_f32', V(dst), V(b), V(b+1))
                g.v('v_cvt_pk_bf16_f32', V(dst+1), V(b+2), V(b+3))
        g.flush()

    def u_q2(g, i, body, t0, t1):
        p=i&1
        g.begin('Q2',body,t0,t1)
        acc=[Q2,ACC+32,XT]
        for k in range(6):
            hb=V(HF+4*(k&1),4)
            g.dsr('ds_read_b128', hb, V(FRA), L_H[p]-FB+6144*2+1024*k, rd=['p:Hok'])
            for n in range(3):
                d=V(VP+8*n+4,4); g.mfma(d, hb, Wv(n,k), d if k else 0)
            for n in range(3):
                d=V(acc[n],4); g.mfma(d, Wq(n,k), hb, d if k else 0)
        g.begin('Q2C',body,t1-30,t1-10)
        for n in range(3):
            b=VP+8*n+4
            g.v('v_cvt_pk_bf16_f32', V(b), V(b), V(b+1))
            g.v('v_cvt_pk_bf16_f32', V(b+1), V(b+2), V(b+3))
            g.dsr('ds_read_u16', V(b+2), V(LVA), 32*n)
            g.v('v_mov_b32', V(b+3), 0)
        g.v('v_add_u32', V(LVA), LS_SLOT, V(LVA))
        for n in range(3):
            b=acc[n]
            g.v('v_cvt_pk_bf16_f32', V(Q2+2*n), V(b), V(b+1))
            g.v('v_cvt_pk_bf16_f32', V(Q2+2*n+1), V(b+2), V(b+3))
        g.flush()

    def dppmov(g, d, s_, row):
        g.v('v_mov_b32_dpp', V(d), V(s_), rmw=True, extra=f' quad_perm:[0,1,2,3] row_mask:{hex(1<<row)} bank_mask:0xf')
    def u_sl(g, body, t0, t1, t2, t3):
        g.begin('SL',body,t0,t1)
        reg=ACC+16
        for a_ in range(4): g.mfma(V(reg+4*a_,4), V(Q0,4), V(KP[a_],4), 0 if a_<3 else V(MASK,4))
        for a_ in range(4):
            d=V(reg+4*a_,4); g.mfma(d, V(Q0+4,2), V(KP[a_]+4,2), d, k=16)
        g.begin('EL',body,t2,t3)
        g.dppmov(reg,reg+4,1); g.dppmov(reg,reg+8,2); g.dppmov(reg,reg+13,3)
        if g.cfg['safe']:
            m=reg+1; m2=reg+2
            g.v('v_mov_b32', V(m), V(reg))
            for r in (8,4,2,1): g.v('v_max_f32_dpp', V(m), V(m), V(m), extra=f' row_ror:{r} row_mask:0xf bank_mask:0xf')
            for n in (16,32):
                g.v('v_mov_b32', V(m2), V(m)); g.swap(n, V(m), V(m2)); g.v('v_max_f32', V(m), V(m), V(m2))
            g.v('v_sub_f32', V(reg), V(reg), V(m))
        g.v('v_exp_f32', V(reg), V(reg))
        g.v('v_cvt_pk_bf16_f32', V(reg), V(reg), 0)
        g.dsw('ds_write_b16', V(PWA), V(reg,1), 0, wr=['p:o:PL'])
        g.dsr('ds_read_b128', V(PL,4), V(LQA), 0, rd=['p:o:PL'])
        g.dsr('ds_read_b128', V(PL+4,4), V(LQA), 16, rd=['p:o:PL'])
        g.v('v_add_u32', V(LQA), LS_SLOT, V(LQA))
        g.flush()
    def u_pvl(g, body, t0, t1, t2, t3):
        g.begin('PVL',body,t0,t1)
        reg=ACC+16
        for ks in range(2):
            d=V(reg+12,4); g.mfma(d, V(PL+4*ks,4), V(ONES,4), d if ks else 0)
            for dt in range(3):
                d=V(reg+4*dt,4); g.mfma(d, V(PL+4*ks,4), V(VP+8*dt+4*ks,4), d if ks else 0)
        g.begin('NL',body,t2,t3)
        g.v('v_rcp_f32', V(reg+13), V(reg+12))
        g.dppmov(reg,reg+4,1); g.dppmov(reg,reg+8,2)
        if not g.cfg['safe']: g.v('v_max3_u32', V(CHK), V(CHK), V(reg+12), V(reg+13))
        g.v('v_mul_f32', V(reg+13), sRA, V(reg+13))
        g.v('v_mul_f32', V(reg), V(reg), V(reg+13))
        g.v('v_cvt_pk_bf16_f32', V(reg), V(reg), 0)
        g.dsw('ds_write_b16', V(PWA), V(reg,1), 0, wr=['p:o:PL'])
        g.v('v_add_u32', V(PWA), LS_SLOT, V(PWA))
        g.flush()

    def u_left(g, i, body, t0):
        g.begin('LEFT',body,t0,t0+10)
        g.dsr('ds_read_b128', V(KL,4), V(LQA), 512)
        g.dsr('ds_read_b64', V(KL+4,2), V(LQA), 512+16)
        g.v('v_mov_b32', V(PP+7), 0)
        g.flush()

    def u_s(g, body, t, t0, t1):
        g.begin(f'S{t}',body,t0,t1)
        reg=ACC+16*(t&1); q=QP[t] if t<3 else Q0
        for a_ in (0,1,3,2):
            d=V(reg+4*a_,4)
            g.mfma(d, V(KP[a_],4), V(q,4), 0 if a_<3 else V(MASK,4))
        for a_ in (0,1,3,2):
            d=V(reg+4*a_,4)
            g.mfma(d, V(KP[a_]+4,2), V(q+4,2), d, k=16)
        if t==0:
            g.dsr('ds_read_b128', V(Q0,4), V(LQA), 0)
            g.dsr('ds_read_b64', V(Q0+4,2), V(LQA), 16)
        g.flush()
    def u_e(g, body, t, t0, t1):
        g.begin(f'E{t}',body,t0,t1)
        reg=ACC+16*(t&1)
        order=[0,1,2,3,4,5,6,7,12,8,9,10,11]
        if g.cfg['safe']:
            TM0=reg+13; TM1=reg+14
            g.v('v_max3_f32', V(TM0), V(reg), V(reg+1), V(reg+2))
            for r in range(3,13,2): g.v('v_max3_f32', V(TM0), V(TM0), V(reg+r), V(reg+r+1))
            for n in (16,32):
                g.v('v_mov_b32', V(TM1), V(TM0))
                g.swap(n, V(TM0), V(TM1))
                g.v('v_max_f32', V(TM0), V(TM0), V(TM1))
            for r in order: g.v('v_sub_f32', V(reg+r), V(reg+r), V(TM0))
        for r in order: g.v('v_exp_f32', V(reg+r), V(reg+r))
        for r in range(6): g.v('v_cvt_pk_bf16_f32', V(PP+r), V(reg+2*r), V(reg+2*r+1))
        g.v('v_cvt_pk_bf16_f32', V(PP+6), V(reg+12), 0)
        g.flush()
    def u_pv(g, body, t, t0, t1):
        g.begin(f'PV{t}',body,t0,t1)
        reg=ACC+16*(t&1)
        for ks in range(2):
            d=V(reg+12,4); g.mfma(d, V(ONES,4), V(PP+4*ks,4), d if ks else 0)
            for dt in range(3):
                d=V(reg+4*dt,4); g.mfma(d, V(VP+8*dt+4*ks,4), V(PP+4*ks,4), d if ks else 0)
        g.flush()
    def u_n(g, body, t, t0, t1):
        g.begin(f'N{t}',body,t0,t1)
        reg=ACC+16*(t&1)
        g.v('v_rcp_f32', V(reg+13), V(reg+12))
        if not g.cfg['safe']: g.v('v_max3_u32', V(CHK), V(CHK), V(reg+12), V(reg+13))
        g.v('v_mul_f32', V(reg+13), sRA, V(reg+13))
        for r in range(6):
            g.v('v_mul_f32', V(reg+2*r), V(reg+2*r), V(reg+13))
            g.v('v_mul_f32', V(reg+2*r+1), V(reg+2*r+1), V(reg+13))
            g.v('v_cvt_pk_bf16_f32', V(reg+r), V(reg+2*r), V(reg+2*r+1))
            if r==3: g.dsw('ds_write_b128', V(FW1), V(reg,4), L_O-FB+6144*t, rd=['p:Ofree'], wr=[f'p:Ow{t}a']+(['p:o:BC'] if t==0 else []))
        g.dsw('ds_write_b64', V(FW2), V(reg+4,2), L_O-FB+6144*t, rd=['p:Ofree'], wr=[f'p:Ow{t}b'])
        g.flush()
    def u_d(g, i, body, t, t0, t1, te0, te1):
        p=i&1
        g.begin(f'D{t}',body,t0,t1)
        bufs=[HF,HF+4,ACC+32]
        for k in range(6):
            ob=V(bufs[(k+2)%3],4)
            g.dsr('ds_read_b128', ob, V(FRA), L_O-FB+6144*t+1024*k, rd=[f'p:Ook{t}'], wr=[f'p:Or{t}_{k}'])
            for c in range(3):
                d=V(X0[p]+12*t+4*c,4); g.mfma(d, Wo(c,k), ob, d)
        g.begin(f'DE{t}',body,te0,te1)
        for c in range(3):
            b=X0[p]+12*t+4*c; o=(Q0+2*c,K0+2*c,VP+8*c+2)[t]
            g.v('v_cvt_pk_bf16_f32', V(o), V(b), V(b+1))
            g.v('v_cvt_pk_bf16_f32', V(o+1), V(b+2), V(b+3))
            g.bstore('buffer_store_dwordx2', V(o,2), V(STA+t), SRO, sO[p], 32*c, flags=g.cfg['stflags'], rd=['p:o:ST'], wr=['p:o:ST']).ta=64
        g.flush()

    def body(g, i):
        T=g.cfg['times']
        ok=lambda w: 0<=w<NWIN
        merge=g.cfg['mergebx']
        xw=[f'p:Xw{R}' for R in range(9)]
        if ok(i-1) or (merge and ok(i+1)):
            g.begin('BO2',i,T['bo2'],T['bo2'])
            g.barrier(rd=['p:Ow2a','p:Ow2b']+(xw if merge else []), wr=['p:Ook2']+(['p:Xok'] if merge else []))
        if ok(i-1): g.u_d(i-1,i,2,*T['d2'])
        if ok(i):
            g.begin('SO',i,T['so'],T['so']); g.s('s_mov_b32', sO[i&1], sB[i&1]); g.flush()
        if ok(i+1):
            if not merge:
                g.begin('BX',i,T['bx'],T['bx']); g.barrier(rd=xw, wr=['p:Xok'])
            g.u_conv(i+1,i,*T['conv'])
            g.u_stat(i+1,i,T['stat'])
        if -1<=i<NWIN: g.u_bs(i,T['bs'])
        if ok(i+2): g.u_dma(i+2,i,*T['dma'])
        if ok(i+1): g.u_norm(i+1,i,T['norm'])
        hw=[f'p:Hw{t}{x}' for t in range(3) for x in 'ab']
        if ok(i):
            g.u_qkv(i,i,*T['qkv'])
            g.u_left(i,i,T['left'])
            g.u_s(i,0,*T['s0']); g.u_s(i,1,*T['s1'])
            g.u_q2(i,i,*T['q2'])
            g.u_e(i,0,*T['e0']); g.u_pv(i,0,*T['pv0'])
            g.u_e(i,1,*T['e1']); g.u_pv(i,1,*T['pv1'])
            g.u_n(i,0,*T['n0']); g.u_s(i,2,*T['s2'])
            g.u_n(i,1,*T['n1']); g.u_sl(i,*T['sl'])
        if -1<=i<NWIN:
            g.begin('BO01',i,T['bo01'],T['bo01'])
            g.barrier(rd=['p:Ow0a','p:Ow0b','p:Ow1a','p:Ow1b']+hw, wr=['p:Ook0','p:Ook1','p:Hok'])
            g.flush()
        if ok(i):
            g.u_d(i,i,0,*T['d0'])
            g.u_e(i,2,*T['e2']); g.u_pv(i,2,*T['pv2'])
            g.u_pvl(i,*T['pvl'])
            g.u_d(i,i,1,*T['d1'])
            g.u_n(i,2,*T['n2'])
        g.flush()

TIMES=dict(
  bo2=-30, d2=(0,70,75,100), so=0, bx=60,
  conv=(70,330), stat=[(160,210),(250,300),(330,380),(380,405)], bs=410, dma=(415,560),
  norm=[(415,470),(490,550),(550,610),(610,670)],
  qkv=(70,690), left=600,
  s0=(690,720), s1=(720,750), q2=(750,890), e0=(730,800), pv0=(890,920), e1=(800,900), pv1=(920,950),
  n0=(920,960), s2=(960,990), n1=(970,1010), sl=(1010,1040,1045,1055), bo01=1015,
  d0=(1040,1110,1140,1150), e2=(1020,1080), pv2=(1080,1100), pvl=(1120,1150,1190,1200), d1=(1150,1240,1245,1260),
  n2=(1110,1160))
def load_tuned(cfg, fn):
    import json
    c=json.load(open(fn)); T=dict(TIMES)
    for k,v in c['t'].items(): T[k]=tuple(v)+tuple(TIMES[k][2:])
    cfg['times']=T; cfg['sp']=c['sp']; cfg.update(c['opt'])
CFG=dict(period=1250, times=TIMES, safe=False, ldflags=' nt', stflags='', rlead=40, sched=True, q2jit=True, mergebx=True)

def main_stream(cfg):
    g=Gen(cfg)
    for i in range(0,NWIN+1): g.body(i)
    ref=g.ins
    if not cfg['sched']:
        segs={}
        for i in ref: segs.setdefault(i.win,[]).append(i)
        order=[segs[k] for k in sorted(segs)]
    else:
        g2=Gen(cfg)
        nb=8
        for i in range(-1,nb): g2.body(i)
        o=schedule(g2.ins, **cfg.get('sp',{}))
        cut=cfg.get('cut',('QKV1',30))
        pos={(i.uid,i.win):n for n,i in enumerate(o)}
        tm={(i.uid,i.win):i.t for i in o}
        if cfg.get('verbose'): print("cut times", [tm[(cut,b)] for b in range(0,nb)], file=sys.stderr)
        order=None
        for b in (4,3,5,2):
            a0,a1=pos[(cut,b)],pos[(cut,b+1)]
            tpl=[(i.uid,i.win-b) for i in o[a0:a1]]
            uids=[u for u,_ in tpl]
            full=set(i.uid for i in g2.ins if i.win==3)
            if len(set(uids))!=len(uids) or set(uids)!=full:
                print("template not periodic at",b,len(uids),len(full), file=sys.stderr); continue
            by={(i.uid,i.win):i for i in ref}
            order=[]
            for sg in range(-3,NWIN+3):
                seg=[by[(u,sg+off)] for u,off in tpl if (u,sg+off) in by]
                if seg: order.append(seg)
            flat=[i for sg in order for i in sg]
            if len(flat)==len(ref) and check_order(ref,flat): break
            order=None
        assert order is not None, "no valid template"
    build_deps(ref)
    flat=[]
    for n,sg in enumerate(order):
        x=I(f"@seg{n}",'X'); x.preds={}; x.tag='seg'; flat.append(x); flat+=sg
    fin,tot=finalize(flat); stall=0
    segs=[]
    for i in fin:
        if i.tag=='seg': segs.append([])
        else: segs[-1].append(i)
    if cfg.get('verbose'):
        st=[i.t for i in fin if i.tag=='seg']
        print("segment start slots",st,"total",tot,"stall",stall, file=sys.stderr)
        mid=segs[len(segs)//2]
        from collections import Counter
        print(Counter(i.kind+(':'+i.tag if i.tag else '') for i in mid), file=sys.stderr)
    return segs

def emit_main(segs, label, st0='', st1='', fine=None):
    T=["\n".join(i.text for i in sg) for sg in segs]
    n=len(T)
    per=[k for k in range(n-2) if T[k]==T[k+2]]
    a0=per[0]; b0=a0
    while b0 in per: b0+=1
    b0+=2
    reps=(b0-a0)//2
    out=[]
    for k in range(a0): out.append(T[k])
    out.append(f"{st0}s_mov_b32 {txt(sCNT)}, {reps}\n.p2align 3\n{label}_loop:")
    if fine:
        sg=segs[a0]; t0=sg[0].t; L=[]; k=0; info=[]
        for n_,i in enumerate(sg):
            L.append(i.text)
            if k<len(fine) and i.t-t0>=fine[k] and i.kind=='M' and n_+1<len(sg) and sg[n_+1].kind not in 'sB':
                L.append(f"s_memtime s[{56+2*k}:{57+2*k}]"); info.append((i.t-t0,i.uid)); k+=1
        print("FINE",info,file=sys.stderr)
        out.append("; FINE "+" ".join(str(4*x[0]) for x in info))
        out.append("\n".join(L))
    else: out.append(T[a0])
    out.append(T[a0+1])
    out.append(f"s_sub_u32 {txt(sCNT)}, {txt(sCNT)}, 1\ns_cmp_lg_u32 {txt(sCNT)}, 0\ns_cbranch_scc1 {label}_loop\n{st1}")
    for sg in (segs[a0], segs[a0+2*reps]):
        for i in sg:
            if 'scc' in i.rd: raise SystemExit("scc live across loop edge")
            if 'scc' in i.wr: break
    for k in range(a0+2*reps,n): out.append(T[k])
    print(f"{label}: {n} segments, peel {a0}, loop x{reps}, tail {n-a0-2*reps}", file=sys.stderr)
    return "\n".join(out)

if __name__=="__main__":
    cfg=dict(CFG); cfg['verbose']=True
    if len(sys.argv)>1: load_tuned(cfg,sys.argv[1])
    segs=main_stream(cfg)
    s=emit_main(segs,"F")
    open("main.txt","w").write("\n".join(f"{i.t:6d} {i.uid[0] if i.uid else '':6s} {i.text}" for i in segs[10]))
```

```python
import re, heapq
from collections import defaultdict

def rng(prefix, a, n):
    return [f"{prefix}{a+i}" for i in range(n)]
def V(a, n=1): return ('v', a, n)
def A(a, n=1): return ('a', a, n)
def S(a, n=1): return ('s', a, n)
def txt(r):
    if isinstance(r, tuple):
        p, a, n = r
        return f"{p}{a}" if n == 1 else f"{p}[{a}:{a+n-1}]"
    return str(r)
def regs(r):
    if isinstance(r, tuple):
        return rng(r[0], r[1], r[2])
    if r in ('vcc', 'm0', 'exec', 'scc'): return [r]
    return []
def sub(r, off, n=1): return (r[0], r[1]+off, n)

class I:
    __slots__ = ('text','kind','rd','wr','mc','cost','cnt','uid','win','prio','lds','trans','perm','preds','succs','idx','t','arr','npred','early','wide','tag','ta','lb','vlat','mt')
    def __init__(s, text, kind, rd=(), wr=(), mc=(), cost=1, cnt=None, lds=0, trans=False, perm=False, wide=()):
        s.text=text; s.kind=kind; s.rd=list(rd); s.wr=list(wr); s.mc=list(mc); s.cost=cost; s.cnt=cnt
        s.lds=lds; s.trans=trans; s.perm=perm; s.uid=None; s.win=None; s.prio=0.0; s.early=None; s.wide=list(wide); s.tag=''; s.ta=16; s.vlat=None; s.mt=('K' if '16x16x16' in text else 'Z' if 'smfmac' in text else 'M') if kind=='M' else None
    def __repr__(s): return f"<{s.kind} {s.text}>"

TRANS = ('v_exp_f32','v_rcp_f32','v_rsq_f32','v_log_f32','v_sqrt_f32')
class Prog:
    def __init__(s):
        s.ins=[]
    def add(s, i): s.ins.append(i); return i
    def mfma(s, d, a, b, c, k=32):
        op = {32:'v_mfma_f32_16x16x32_bf16', 16:'v_mfma_f32_16x16x16_bf16'}[k]
        return s.add(I(f"{op} {txt(d)}, {txt(a)}, {txt(b)}, {txt(c)}", 'M', regs(a)+regs(b)+regs(c), regs(d), mc=regs(c)))
    def smfmac(s, d, a, b, idx):
        return s.add(I(f"v_smfmac_f32_16x16x64_bf16 {txt(d)}, {txt(a)}, {txt(b)}, {txt(idx)}", 'M', regs(a)+regs(b)+regs(idx)+regs(d), regs(d), mc=regs(d)))
    def v(s, op, d, *src, rmw=False, extra='', rd=(), wr=()):
        r=[]; t=[]
        for x in src:
            if isinstance(x, tuple) and x[0]=='neg':
                r+=regs(x[1]); t.append('-'+txt(x[1]))
            else:
                r+=regs(x); t.append(txt(x))
        if rmw: r+=regs(d)
        base=op.replace('_e32','').replace('_e64','')
        tr = base in TRANS
        return s.add(I(f"{op} {txt(d)}, {', '.join(t)}{extra}", 'V', r+list(rd)+['exec'], regs(d)+list(wr), cost=2 if tr else 1, trans=tr))
    def swap(s, n, a, b):
        return s.add(I(f"v_permlane{n}_swap_b32 {txt(a)}, {txt(b)}", 'V', regs(a)+regs(b)+['exec'], regs(a)+regs(b), cost=2, perm=True))
    def dsr(s, op, d, addr, off=0, rd=(), wr=(), lds=None):
        if lds is None: lds={'ds_read_b128':4,'ds_read_b64':2,'ds_read_b32':2,'ds_read_u16':2,'ds_read_b64_tr_b16':2}[op]
        assert 0<=off<65536, off
        o=f" offset:{off}" if off else ""
        return s.add(I(f"{op} {txt(d)}, {txt(addr)}{o}", 'R', regs(addr)+list(rd)+['exec'], regs(d)+list(wr), cnt='lgkm', lds=lds))
    def dsw(s, op, addr, data, off=0, rd=(), wr=()):
        n=data[2]; lds={1:4,2:7,4:13}[n]
        assert 0<=off<65536, off
        o=f" offset:{off}" if off else ""
        return s.add(I(f"{op} {txt(addr)}, {txt(data)}{o}", 'W', regs(addr)+regs(data)+list(rd)+['exec'], list(wr), cost=n+1, cnt='lgkm', lds=lds))
    def bload(s, op, d, voff, srd, soff, off=0, flags='', rd=(), wr=()):
        assert 0<=off<4096
        o=f" offset:{off}" if off else ""
        return s.add(I(f"{op} {txt(d)}, {txt(voff)}, {txt(srd)}, {txt(soff)} offen{o}{flags}", 'G', regs(voff)+regs(srd)+regs(soff)+list(rd)+['exec'], regs(d)+list(wr), cost=2, cnt='vm'))
    def dma(s, voff, srd, soff, flags='', rd=(), wr=()):
        return s.add(I(f"buffer_load_dwordx4 {txt(voff)}, {txt(srd)}, {txt(soff)} offen{flags} lds", 'G', regs(voff)+regs(srd)+regs(soff)+['m0']+list(rd)+['exec'], list(wr), cost=2, cnt='vm', lds=8))
    def bstore(s, op, data, voff, srd, soff, off=0, flags='', rd=(), wr=()):
        assert 0<=off<4096
        o=f" offset:{off}" if off else ""
        n=data[2]
        return s.add(I(f"{op} {txt(data)}, {txt(voff)}, {txt(srd)}, {txt(soff)} offen{o}{flags}", 'G', regs(voff)+regs(srd)+regs(soff)+regs(data)+list(rd)+['exec'], list(wr), cost=2 if n<=2 else 4, cnt='vm', wide=regs(data) if n>2 else ()))
    def s(s_, op, d, *src, scc_w=None, scc_r=False, rd=(), wr=()):
        r=[]
        for x in src: r+=regs(x)
        w=regs(d) if d is not None else []
        if scc_w is None:
            scc_w = op.split('_')[1] in ('add','sub','addc','subb','lshl','lshr','and','or','xor','cmp','min','max','andn2','bfe','ashr','cmpk','addk')
        if op.startswith('s_cselect') or op.startswith('s_addc') or op.startswith('s_subb'): scc_r=True
        if scc_w: w=w+['scc']
        if scc_r: r=r+['scc']
        ops=([txt(d)] if d is not None else [])+[txt(x) for x in src]
        return s_.add(I(f"{op} {', '.join(ops)}", 's', r+list(rd), w+list(wr)))
    def barrier(s, rd=(), wr=()):
        return s.add(I("s_barrier", 'B', list(rd)+['p:bar'], list(wr)+['p:bar']))
    def fuse(s, n):
        L=s.ins[-n:]; del s.ins[-n:]
        x=L[-1]; rd=[]; wr=[]
        for i in L:
            rd+=[r for r in i.rd if r not in wr and r not in rd]; wr+=[r for r in i.wr if r not in wr]
        assert 'm0' not in rd and 'scc' not in rd
        x.text="\n".join(i.text for i in L); x.rd=rd; x.wr=[r for r in wr if r not in ('m0','scc')]; x.cost=sum(i.cost for i in L)
        s.ins.append(x); return x
    def raw(s, text, rd=(), wr=(), kind='s', cnt=None):
        return s.add(I(text, kind, rd, wr, cnt=cnt))

def build_deps(ins):
    lastw={}; readers=defaultdict(list)
    for n,i in enumerate(ins):
        i.preds={}; i.succs=[]
    for n,i in enumerate(ins):
        for r in i.rd:
            if r in lastw: i.preds.setdefault(lastw[r], set()).add(('raw', r))
        for r in i.wr:
            if r in lastw and lastw[r] is not i: i.preds.setdefault(lastw[r], set()).add(('waw', r))
            for p in readers[r]:
                if p is not i: i.preds.setdefault(p, set()).add(('war', r))
        for r in i.rd: readers[r].append(i)
        for r in i.wr:
            lastw[r]=i; readers[r]=[]
    for i in ins:
        for p in i.preds: p.succs.append(i)

def isreg(r): return not r.startswith('p:')

def hazard(p, c, deps):
    w=0
    for ty,r in deps:
        if not isreg(r): continue
        if p.kind=='M':
            if ty=='raw':
                if c.kind=='M':
                    if r in c.mc and c.mc==p.wr and not (r in c.rd[:len(c.rd)-len(c.mc)]) and c.text.split()[0]==p.text.split()[0]: w=max(w,0)
                    elif r in c.mc: w=max(w,6)
                    else: w=max(w,8)
                else: w=max(w,8)
            elif ty=='waw':
                if c.kind=='M':
                    w=max(w, 0 if c.wr==p.wr else 6)
                else: w=max(w,8)
            elif ty=='war':
                if r in p.mc and c.kind!='M': w=max(w,3)
        elif p.kind=='V':
            if ty=='raw':
                if c.kind=='M': w=max(w,2 if r!='exec' else 4)
                elif c.kind=='V':
                    if r[0]=='s' or r=='vcc': w=max(w,2)
                    if c.perm or 'dpp' in c.text: w=max(w,2)
                    if p.trans and not c.trans: w=max(w,1)
                    if 'readfirstlane' in c.text or 'readlane' in c.text: w=max(w,1)
                elif c.kind=='G':
                    if r[0]=='s': w=max(w,5)
                    if p.trans: w=max(w,1)
                elif c.kind in 'RW':
                    if p.trans: w=max(w,1)
                elif c.kind=='s':
                    w=max(w,1)
        elif p.kind=='s':
            if ty=='raw' and r=='m0': w=max(w,1)
        elif p.kind=='G':
            if ty=='war' and r in p.wide: w=max(w,2)
    return w

def needs_wait(p, deps):
    if p.cnt is None: return False
    for ty,r in deps:
        if ty in ('raw','waw') and not r.startswith('p:o:') and r[0]!='s': return True
    return False

LAT_LDS=16; LAT_VM=400; MARGIN=4; TASLACK=16
class Model:
    def __init__(s):
        s.t=0; s.lastM=-99; s.lastV=-99; s.ldsfree=0; s.wfree=0; s.tafree=0; s.mblock=0; s.vmarr=0; s.lmt='M'
    def earliest(s, i):
        t=s.t
        dd=1 if s.lmt=='K' else 2
        if i.kind=='M': t=max(t, s.lastM+(5 if (i.mt=='K')!=(s.lmt=='K') else 4), s.mblock)
        elif i.kind=='V': t=max(t, s.lastM+(3 if s.lmt=='Z' else dd))
        elif i.kind in 'RW': t=max(t, s.lastM+dd, s.lastV+2, s.wfree, s.ldsfree-12)
        elif i.kind=='G': t=max(t, s.lastM+dd, s.lastV+2, s.tafree-(TASLACK if i.ta>18 else 64))
        return t
    def issue(s, i, t):
        i.t=t
        if i.kind=='M': s.lastM=t; i.arr=t+9; s.lmt=i.mt
        s.t=t+i.cost
        if i.kind=='V': s.lastV=s.t; i.arr=s.t
        if i.kind in 'sBX': i.arr=s.t
        if i.kind in 'RW':
            st=max(t, s.ldsfree); s.ldsfree=st+i.lds; i.arr=s.ldsfree+LAT_LDS
            if i.kind=='W': s.wfree=t+i.lds
        if i.kind=='G':
            s.tafree=max(t,s.tafree)+i.ta
            i.arr=max(s.tafree+(LAT_VM if i.vlat is None else i.vlat), s.vmarr); s.vmarr=i.arr
            if 'store' in i.text: s.mblock=t+i.cost+1
        if i.kind=='B': s.t+=3

def schedule(ins, window=2000, mempref=60, oldthr=40, edf=1.0, rslack=8, vw=2, swthr=16):
    build_deps(ins)
    if edf:
        ms=sorted([i for i in ins if i.kind=='M'], key=lambda i:i.prio)
        for k,i in enumerate(ms): i.prio=k*4*edf
        last=len(ms)*4*edf
        for i in reversed(ins):
            if i.kind=='M': continue
            dl=last+50
            for sx in i.succs:
                d=sx.preds[i]
                if needs_wait(i,d): lat=(i.lds+LAT_LDS+MARGIN+rslack) if i.cnt=='lgkm' else ((LAT_VM if i.vlat is None else i.vlat)+i.ta)
                else: lat=max(hazard(i,sx,d)+1, vw*i.cost if i.kind!='s' else 4)
                if i.kind=='G' and sx.kind=='G': lat=max(lat,i.ta)
                dl=min(dl,sx.prio-lat)
            if i.tag!='top': i.prio=dl
    for i in ins:
        i.npred=len(i.preds); i.idx=None
    hz={}
    def prep(i):
        hz[id(i)]=[(p,hazard(p,i,d),needs_wait(p,d)) for p,d in i.preds.items()]
    ready=[i for i in ins if i.npred==0]
    for i in ready: prep(i)
    out=[]; m=Model(); n=0
    covered={'lgkm':-1,'vm':-1}
    pend={'lgkm':[], 'vm':[]}
    while ready:
        cand=[]
        pm=min(i.prio for i in ready)
        nl=sum(1 for x in pend['lgkm'] if x.idx>covered['lgkm'])
        for i in ready:
            if i.prio>pm+window: continue
            e=m.earliest(i); wait=False
            if i.early is not None: e=max(e,i.early)
            for p,h,w in hz[id(i)]:
                if h and p.t+h+1>e: e=p.t+h+1
                if w and p.idx>covered[p.cnt]:
                    wait=True
                    if p.arr+MARGIN>e: e=p.arr+MARGIN
            if i.cnt=='lgkm' and nl>=13: e=max(e, m.t+3)
            cand.append((i,e,wait))
        now=[c for c in cand if c[1]<=m.t]
        inshadow = (m.t==m.lastM+1 and m.lmt!='K')
        pick=None
        if inshadow:
            want=[c for c in cand if c[2] and c[1]<=m.t+3]
            sc=[c for c in now if c[0].kind in 'sB' and not c[2]]
            if sc and not (want and min(c[0].prio for c in want)<min(c[0].prio for c in sc)+200): pick=min(sc,key=lambda c:c[0].prio)
            else:
                for c_ in pend:
                    for x in pend[c_]:
                        if x.arr<=m.t and x.idx>covered[c_]: covered[c_]=x.idx
                    pend[c_]=[x for x in pend[c_] if x.idx>covered[c_]]
                m.t+=1
                continue
        else:
            ms=[c for c in now if c[0].kind=='M']
            if ms:
                pick=min(ms,key=lambda c:(c[0].prio+(30 if c[2] else 0)))
                if any(c[0].kind=='M' and c[1]==m.t+1 and c[0].prio<pick[0].prio-swthr for c in cand):
                    pick=None; now=[c for c in now if c[0].kind!='M' and c[0].cost==1]
            if pick is None:
                nons=[c for c in now if c[0].kind not in 'sB']
                key=lambda c:c[0].prio+(30 if c[2] else 0)
                mem=[c for c in nons if c[0].kind in 'RWG']
                if mem and (not [c for c in nons if c[0].kind=='V'] or min(map(key,mem)) < min(map(key,nons))+mempref):
                    pick=min(mem,key=key)
                elif nons:
                    pick=min(nons,key=key)
                    if pick[0].cost>1 and m.t+1==m.lastM+4 and any(c[0].kind=='M' and c[1]<=m.t+1 for c in cand):
                        one=[c for c in nons if c[0].cost==1 and not c[2]]
                        if one: pick=min(one,key=key)
                    old=[c for c in cand if c[0].kind in 'RWGsB' and c[1]<=m.t+2 and c[0].prio<pick[0].prio-oldthr]
                    if old and not any(c[0].kind=='M' and c[1]<=m.t+3 for c in cand): pick=min(old,key=lambda c:c[0].prio)
                elif now: pick=min(now,key=lambda c:c[0].prio)
                else:
                    for c_ in pend:
                        for x in pend[c_]:
                            if x.arr<=m.t and x.idx>covered[c_]: covered[c_]=x.idx
                        pend[c_]=[x for x in pend[c_] if x.idx>covered[c_]]
                    m.t+=1
                    continue
        i,e,wait=pick
        if wait:
            for p,h,w in hz[id(i)]:
                if w and p.idx>covered[p.cnt]: covered[p.cnt]=p.idx
            m.t+=1
        m.t=max(m.t,e)
        m.issue(i,m.t); i.idx=n; n+=1; out.append(i)
        if i.cnt: pend[i.cnt].append(i)
        ready.remove(i)
        for sx in i.succs:
            sx.npred-=1
            if sx.npred==0: ready.append(sx); prep(sx)
    assert len(out)==len(ins), (len(out), len(ins))
    return out

def check_order(ref, order):
    build_deps(ref)
    pos={id(i):n for n,i in enumerate(order)}
    assert len(pos)==len(ref)
    bad=0
    for i in ref:
        for p in i.preds:
            if pos[id(p)]>pos[id(i)]:
                bad+=1
                if bad<5: print("ORDER VIOLATION", p.uid, p.win, p.text, '->', i.uid, i.win, i.text, i.preds[p])
    return bad==0

MAXCNT={'lgkm':15,'vm':63}
def finalize(order, lookback=40):
    out=[]; m=Model()
    seq={'lgkm':0,'vm':0}; myseq={}; ops={'lgkm':[], 'vm':[]}
    covered={'lgkm':-1,'vm':-1}
    slots=[]
    def mkwait(t):
        w=I('','s'); w.preds={}; w.tag='wait'; w.early={}; w.t=t; w.idx=dict(seq); return w
    prev=None
    for k,i in enumerate(order):
        if i.kind=='X':
            i.t=m.t; out.append(i); slots=[]; prev=i; continue
        e=m.earliest(i)
        if e>m.t and i.kind not in 'sB':
            w=mkwait(e-1); out.append(w); slots.append(w)
        for c in ('lgkm','vm'):
            need=-1
            for p,d in i.preds.items():
                if p.cnt==c and needs_wait(p,d) and myseq[id(p)]>need: need=myseq[id(p)]
            if need>covered[c]:
                arr=max(x.arr for x in ops[c][covered[c]+1:need+1])
                place=None
                if slots and slots[-1].idx[c]>need and (slots[-1].t>=arr or out[-1] is slots[-1]) and m.t-slots[-1].t<lookback: place=slots[-1]
                if place is None:
                    place=mkwait(m.t); out.append(place); slots.append(place); m.t+=1
                if out[-1] is place and arr>place.t:
                    place.t=arr; m.t=max(m.t,arr+1)
                place.early[c]=max(place.early.get(c,-1),need)
                covered[c]=need
        e=m.earliest(i)
        for p,d in i.preds.items():
            h=hazard(p,i,d)
            if h and p.t+h+1>e: e=p.t+h+1
        m.issue(i,e); out.append(i)
        if i.cnt:
            myseq[id(i)]=seq[i.cnt]; seq[i.cnt]+=1; ops[i.cnt].append(i)
        prev=i
    res=[]
    def short(p,i,h):
        t=1; lastM=0 if p.kind=='M' else -99; tv=0; dd=1 if p.mt=='K' else 2
        for x in res[p.lb+1:p.lb+2+h+4]:
            if x.kind=='X': continue
            if x.kind=='M': t=max(t,lastM+4,tv); lastM=t; dd=1 if x.mt=='K' else 2
            elif x.kind in 'VRWG': t=max(t,lastM+dd,tv)
            if x.kind in 'VW': tv=t+x.cost
            t+= x.cost if x.tag=='nop' else 1
            if t>h: return 0
        ti=t
        if i.kind=='M': ti=max(t,lastM+4,tv)
        elif i.kind in 'VRWG': ti=max(t,lastM+dd,tv)
        return 0 if ti>h else h+1-t
    for i in out:
        if i.tag=='wait':
            if not i.early: continue
            parts=[]
            for c,name in (('vm','vmcnt'),('lgkm','lgkmcnt')):
                if c in i.early:
                    nn=i.idx[c]-1-i.early[c]; assert nn>=0
                    parts.append(f"{name}({min(nn,MAXCNT[c]-1)})")
            i.text="s_waitcnt "+" ".join(parts)
        if i.kind=='X': res.append(i); continue
        hzn=0
        for p,d in i.preds.items():
            h=hazard(p,i,d)
            if h: hzn=max(hzn,short(p,i,h))
        if hzn:
            w=I(f"s_nop {hzn-1}",'s',cost=hzn); w.preds={}; w.tag='nop'; w.t=i.t-hzn
            res.append(w)
        i.lb=len(res); res.append(i)
    return res, m.t
```

```python
import sys, os, struct
from asmlib import *

NAME="standalone__window_attn_davit__vision"
ROW=196224; PIX=384; NB=100270464; NWIN=21
OOB=0x70000000
XROW=257*16; XPIX=25*16
L_X=0
L_H=[37120, 37120+18432]
L_O=L_H[1]+18432
L_ST=L_O+18432
L_BC=L_O
L_LS=L_ST+2048
LS_SLOT=1552
L_CA=L_LS+49152
L_FLAG=L_CA+19008
L_END=L_FLAG+64
LDS_BYTES=163840
assert L_END<=LDS_BYTES
FB=L_H[0]
X0=[0,36]
Q0,K0,Q1,Q2,K1,K2,KL=72,78,84,90,96,102,108
QP=[Q0,Q1,Q2]; KP=[K0,K1,K2,KL]
VP=114
ACC=138
PP=174
HF=182
ONES=190
a=194
CVA=a; a+=9
STA=a; a+=3
MASK=a; a+=1
assert MASK%2==0
MASK2=a; a+=1
DMF=a; a+=1
SWA=a; a+=1
FRA=a; a+=1
FW1=a; a+=1
FW2=a; a+=1
IDX=a; a+=1
PWA=a; a+=1
LQA=a; a+=1
PFA=a; a+=1
CAA=a; a+=1
CHK=a; a+=1
BRA=a; a+=1
XT=a; a+=4
assert a==224, a
DMV=PP+6
PL=Q1
def Wk(dt,k): return A(0+4*(dt*6+k),4)
def Wv(dt,k): return A(72+4*(dt*6+k),4)
def Wo(dt,k): return A(144+4*(dt*6+k),4)
def Wq(dt,k):
    n=dt*6+k
    return A(216+4*n,4) if n<10 else V(224+4*(n-10),4)
SRX=S(4,4); SRO=S(8,4); SRW=S(12,4); SRWO=S(16,4); SRDW=S(20,4); SRWS=S(24,4)
sW=S(32); sW0=S(33); sEND=S(34); sWID=S(35); sB=[S(36),S(37)]; sO=[S(38),S(39)]
sOFF=S(40); sT0=S(41); sT1=S(42); sT2=S(43); sMSK=S(44); sM0=S(45); sCNT=S(46); sMODE=S(47)
sINV=S(48); sEPS=S(49); sWSO=S(50); sT3=S(51); sPF=S(52); sWG=S(53); sMK0=S(72); sINV2=S(73); sRA=S(3); sN=S(50); sTOP=S(52)

LEFT=(4,2)
EVEN_L=[0,1,2,3,12,13,14,15]; ODD_L=[4,5,6,7,8,9,10,11]
def token_map():
    cls={}
    for c in range(7):
        for r in range(7):
            if (r,c)!=LEFT: cls.setdefault((r+9*c)%16,[]).append((r,c))
    tok=[[None]*16 for _ in range(3)]
    for res,lst in cls.items():
        assert len(lst)==3
        lst=sorted(lst)
        lane=(EVEN_L if res%2==0 else ODD_L)[res//2]
        for t in range(3): tok[t][lane]=lst[t]
    return tok
TOK=token_map()
CORN=[(0,0),(0,2),(2,0),(2,2)]; EDGE=[(0,1),(1,0),(1,2),(2,1)]

class Gen(Prog):
    def __init__(s, cfg):
        super().__init__(); s.cfg=cfg; s.unit=None; s.cnt=0
    def begin(s, name, body, t0, t1):
        s.flush(); s.unit=(name, body, t0, t1, len(s.ins))
    def flush(s):
        if s.unit is None: return
        name,body,t0,t1,st=s.unit
        n=len(s.ins)-st
        for k,i in enumerate(s.ins[st:]):
            i.uid=(name,k); i.win=body
            i.prio=body*s.cfg['period']+t0+(t1-t0)*k/max(1,n-1)
            if i.kind=='R': i.prio-=s.cfg.get('rlead',40)
        s.unit=None

    def u_wc(g, i, body, t0, t1, fused=False, pf=True):
        g.begin('WC',body,t0,t1)
        g.s('s_mul_hi_u32', sT0, sWID, 58835169)
        g.s('s_mul_i32', sT1, sT0, 73)
        g.s('s_sub_u32', sT1, sWID, sT1)
        g.s('s_mul_i32', sT2, sT0, 7*ROW)
        g.s('s_mul_i32', sT3, sT1, 7*PIX)
        g.s('s_add_u32', sT2, sT2, sT3)
        g.s('s_cmp_lt_u32', None, sWID, sEND)
        g.s('s_cselect_b32', sN, sT2, OOB)
        g.s('s_add_u32', sWID, sWID, 32)
        g.s('s_cmp_eq_u32', None, sT1, 0)
        g.s('s_cselect_b32', sMSK, 0x1fffffff, sMK0)
        g.s('s_cmp_eq_u32', None, sT1, 72)
        g.s('s_cselect_b32', sMSK, 0x37ffffff, sMSK)
        g.s('s_cmp_eq_u32', None, sT0, 0)
        g.s('s_cselect_b32', sTOP, OOB, OOB if g.cfg.get('hotx') else sN)
        if fused: g.fuse(15)
        if pf and g.cfg['pf']:
            g.s('s_mov_b32', 'm0', L_X+225*16)
            g.s('s_max_u32', sOFF, sN, ROW+PIX)
            x=g.dma(V(PFA), SRX, sOFF, flags=g.cfg['pfflags'], rd=['p:o:DM'], wr=['p:o:DM'])
            x.text=x.text.replace('dwordx4','dword'); x.ta=64
            if fused: g.fuse(3)
        g.flush()
    def u_dma(g, i, body, t0, t1, fused=False):
        p=i&1
        g.begin('DMA',body,t0,t1)
        g.s('s_mov_b32', sB[p], sN)
        g.v('v_and_b32', V(DMV), sMSK, V(DMF))
        for R in range(9):
            g.s('s_add_u32', 'm0', sM0, R*XROW)
            if R>0: g.s('s_add_u32', sOFF, sM0 if g.cfg.get('hotx') else sB[p], R*ROW+(8*ROW if g.cfg.get('hotx') else 0))
            elif fused: g.raw('s_nop 0')
            x=g.dma(V(DMV), SRX, sOFF if R else sTOP, flags=g.cfg['ldflags'], rd=['p:Xfree','p:o:DM'], wr=[f'p:Xw{R}','p:o:DM'])
            x.ta=(16 if fused else g.cfg['dmata']); x.vlat=g.cfg['dmalat']
            if fused: g.fuse(3)
        g.flush()

    def conv_tile(g, c, t, kind, abuf, bbuf, x0, load):
        d=V(x0+12*t+4*c,4)
        if kind==0:
            load(V(bbuf,4), 2, t, c*32)
            g.mfma(d, V(abuf,4), V(bbuf,4), 0)
        else:
            load(V(bbuf,4), kind-1, t, c*32)
            load(V(bbuf+4,4), kind-1, t, c*32+16)
            g.smfmac(d, V(abuf,4), V(bbuf,8), V(IDX))

    def u_conv(g, i, body, t0, t1):
        p=i&1
        g.begin('CONV',body,t0,t1)
        def load(d, pat, t, off): g.dsr('ds_read_b128', d, V(CVA+3*pat+t), off, rd=['p:Xok'])
        n=0; m=0
        for c in range(3):
            for kind in range(3):
                ab=PP+4*(m&1); m+=1
                g.dsr('ds_read_b128', V(ab,4), V(CAA), (c*3+kind)*528)
                for t in range(3):
                    bb=Q1+8*(n%3); n+=1
                    g.conv_tile(c,t,kind,ab,bb,X0[p],load)
        g.flush()

    def stat_acc(g, x0, c, t, s1, s2):
        b=x0+12*t+4*c
        if c==0:
            g.v('v_add_f32', V(s1), V(b), V(b+1))
            g.v('v_mul_f32', V(s2), V(b), V(b))
            g.v('v_add_f32', V(s1), V(s1), V(b+2))
            g.v('v_fmac_f32', V(s2), V(b+1), V(b+1), rmw=True)
            g.v('v_add_f32', V(s1), V(s1), V(b+3))
            g.v('v_fmac_f32', V(s2), V(b+2), V(b+2), rmw=True)
            g.v('v_fmac_f32', V(s2), V(b+3), V(b+3), rmw=True)
        else:
            for r in range(4):
                g.v('v_add_f32', V(s1), V(s1), V(b+r))
                g.v('v_fmac_f32', V(s2), V(b+r), V(b+r), rmw=True)

    def u_stat(g, i, body, times, ntile=3):
        p=i&1; x0=X0[p]
        sr=[VP+8*t+4 for t in range(3)]
        tmp=[VP+8*t+6 for t in range(3)]
        for c in range(3):
            g.begin(f'STAT{c}',body,*times[c])
            for t in range(ntile): g.stat_acc(x0,c,t,sr[t],sr[t]+1)
        g.begin('STATR',body,*times[3])
        for t in range(ntile):
            g.swap(16, V(sr[t]), V(sr[t]+1))
            g.v('v_add_f32', V(sr[t]), V(sr[t]), V(sr[t]+1))
        g.swap(32, V(sr[0]), V(sr[1]))
        g.v('v_add_f32', V(sr[0]), V(sr[0]), V(sr[1]))
        g.dsw('ds_write_b32', V(SWA), V(sr[0],1), 0, wr=['p:STw0'])
        if ntile==3:
            g.v('v_mov_b32', V(sr[2]+1), V(sr[2]))
            g.swap(32, V(sr[2]), V(sr[2]+1))
            g.v('v_add_f32', V(sr[2]), V(sr[2]), V(sr[2]+1))
            g.dsw('ds_write_b32', V(SWA), V(sr[2],1), 512, wr=['p:STw1'])
        g.flush()

    def u_bs(g, body, t):
        g.begin('BS',body,t,t)
        g.barrier(rd=['p:STw0','p:STw1']+[f'p:Or{t}_{k}' for t in range(3) for k in range(6)], wr=['p:STok','p:Xfree','p:Ofree'])
        g.flush()

    def u_norm(g, i, body, times, ntile=3, hbuf=None):
        p=i&1; x0=X0[p]
        if hbuf is None: hbuf=L_H[p]
        sr=[VP+8*t+4 for t in range(3)]
        g.begin('STATF',body,*times[0])
        SF=K2
        g.dsr('ds_read_b128', V(SF,4), V(FRA), L_ST-FB, rd=['p:STok'])
        g.dsr('ds_read_b128', V(SF+4,4), V(FRA), L_ST-FB+1024, rd=['p:STok'])
        g.v('v_add_f32', V(SF), V(SF), V(SF+1)); g.v('v_add_f32', V(SF+4), V(SF+4), V(SF+5))
        g.v('v_add_f32', V(SF+2), V(SF+2), V(SF+3)); g.v('v_add_f32', V(SF+6), V(SF+6), V(SF+7))
        g.v('v_add_f32', V(SF), V(SF), V(SF+2)); g.v('v_add_f32', V(SF+4), V(SF+4), V(SF+6))
        g.v('v_mul_f32', V(SF+1), sINV, V(SF))
        g.v('v_mul_f32', V(SF+2), sINV2, V(SF))
        g.v('v_mul_f32', V(SF+4), sINV2, V(SF+4))
        g.v('v_fma_f32', V(SF+4), ('neg',V(SF+1)), V(SF+2), V(SF+4))
        g.v('v_max_f32', V(SF+4), 0, V(SF+4))
        g.v('v_add_f32', V(SF+4), sEPS, V(SF+4))
        g.v('v_rsq_f32', V(SF), V(SF+4))
        g.v('v_mul_f32_e64', V(SF+1), ('neg',V(SF+1)), V(SF))
        g.dsw('ds_write_b64', V(FW1), V(SF,2), L_BC-FB, wr=['p:o:BC'])
        for t in range(ntile):
            g.dsr('ds_read_b64', V(sr[t],2), V(BRA), 256*t, rd=['p:o:BC'])
        for t in range(ntile):
            g.begin(f'NORM{t}',body,*times[1+t])
            hp=[Q2,PP][t&1]; ft=XT
            n=0
            for c in range(3):
                for h in range(2):
                    b=x0+12*t+4*c+2*h; f=ft+2*(n%2); n+=1
                    g.v('v_fma_f32', V(f), V(b), V(sr[t]), V(sr[t]+1))
                    g.v('v_fma_f32', V(f+1), V(b+1), V(sr[t]), V(sr[t]+1))
                    g.v('v_cvt_pk_bf16_f32', V(hp+2*c+h), V(f), V(f+1))
                if c==1: g.dsw('ds_write_b128', V(FW1), V(hp,4), hbuf-FB+6144*t, wr=[f'p:Hw{t}a'])
            g.dsw('ds_write_b64', V(FW2), V(hp+4,2), hbuf-FB+6144*t, wr=[f'p:Hw{t}b'])
        g.flush()

    def u_qkv(g, i, body, t0, t1):
        p=i&1
        bd=[0,3/7,6/7,1]
        bd=[t0+(t1-t0)*x for x in bd]
        for t in range(3):
            g.begin(f'QKV{t}',body,bd[t],bd[t+1])
            for k in range(6):
                hb=V(HF+4*(k&1),4)
                g.dsr('ds_read_b128', hb, V(FRA), L_H[p]-FB+6144*t+1024*k, rd=['p:Hok'])
                for n in range(9):
                    if t==2 and n>=3: continue
                    d=V(ACC+4*n,4); c=d if k else 0
                    if n<3: g.mfma(d, Wk(n,k), hb, c)
                    elif n<6: g.mfma(d, Wq(n-3,k), hb, c)
                    else: g.mfma(d, hb, Wv(n-6,k), c)
            e=bd[t+1]
            g.begin(f'QKVC{t}',body,e-60,e-40)
            for n in range(9):
                if t==2 and n>=3: continue
                b=ACC+4*n
                dst = KP[t]+2*n if n<3 else (QP[t]+2*(n-3) if n<6 else VP+8*(n-6)+2*t)
                g.v('v_cvt_pk_bf16_f32', V(dst), V(b), V(b+1))
                g.v('v_cvt_pk_bf16_f32', V(dst+1), V(b+2), V(b+3))
        g.flush()

    def u_q2(g, i, body, t0, t1):
        p=i&1
        g.begin('Q2',body,t0,t1)
        acc=[Q2,ACC+32,XT]
        for k in range(6):
            hb=V(HF+4*(k&1),4)
            g.dsr('ds_read_b128', hb, V(FRA), L_H[p]-FB+6144*2+1024*k, rd=['p:Hok'])
            for n in range(3):
                d=V(VP+8*n+4,4); g.mfma(d, hb, Wv(n,k), d if k else 0)
            for n in range(3):
                d=V(acc[n],4); g.mfma(d, Wq(n,k), hb, d if k else 0)
        g.begin('Q2C',body,t1-30,t1-10)
        for n in range(3):
            b=VP+8*n+4
            g.v('v_cvt_pk_bf16_f32', V(b), V(b), V(b+1))
            g.v('v_cvt_pk_bf16_f32', V(b+1), V(b+2), V(b+3))
            g.dsr('ds_read_u16', V(b+2), V(PWA), 1024+8*n)
            g.v('v_mov_b32', V(b+3), 0)
        for n in range(3):
            b=acc[n]
            g.v('v_cvt_pk_bf16_f32', V(Q2+2*n), V(b), V(b+1))
            g.v('v_cvt_pk_bf16_f32', V(Q2+2*n+1), V(b+2), V(b+3))
        g.flush()

    def dppmov(g, d, s_, row):
        g.v('v_mov_b32_dpp', V(d), V(s_), rmw=True, extra=f' quad_perm:[0,1,2,3] row_mask:{hex(1<<row)} bank_mask:0xf')
    def u_sl(g, body, t0, t1, t2, t3):
        g.begin('SL',body,t0,t1)
        reg=ACC+16
        kf=g.cfg['kfirst'][3]
        for ps in range(2):
            for a_ in range(4):
                d=V(reg+4*a_,4); c=d if ps else (0 if a_<3 else V(MASK,4))
                if ps==kf: g.mfma(d, V(Q0,4), V(KP[a_],4), c)
                else: g.mfma(d, V(Q0+4,2), V(KP[a_]+4,2), c, k=16)
        g.begin('EL',body,t2,t3)
        g.dppmov(reg,reg+4,1); g.dppmov(reg,reg+8,2); g.dppmov(reg,reg+13,3)
        if g.cfg['safe']:
            m=reg+1; m2=reg+2
            g.v('v_mov_b32', V(m), V(reg))
            for r in (8,4,2,1): g.v('v_max_f32_dpp', V(m), V(m), V(m), extra=f' row_ror:{r} row_mask:0xf bank_mask:0xf')
            for n in (16,32):
                g.v('v_mov_b32', V(m2), V(m)); g.swap(n, V(m), V(m2)); g.v('v_max_f32', V(m), V(m), V(m2))
            g.v('v_sub_f32', V(reg), V(reg), V(m))
        g.v('v_exp_f32', V(reg), V(reg))
        g.v('v_cvt_pk_bf16_f32', V(reg), V(reg), 0)
        g.dsw('ds_write_b16', V(PWA), V(reg,1), 0, wr=['p:o:PL'])
        g.dsr('ds_read_b128', V(PL,4), V(LQA), 0, rd=['p:o:PL'])
        g.dsr('ds_read_b128', V(PL+4,4), V(LQA), 16, rd=['p:o:PL'])
        g.v('v_add_u32', V(LQA), LS_SLOT, V(LQA))
        g.flush()
    def u_pvl(g, body, t0, t1, t2, t3):
        g.begin('PVL',body,t0,t1)
        reg=ACC+16
        for ks in range(2):
            d=V(reg+12,4); g.mfma(d, V(PL+4*ks,4), V(ONES,4), d if ks else 0)
            for dt in range(3):
                d=V(reg+4*dt,4); g.mfma(d, V(PL+4*ks,4), V(VP+8*dt+4*ks,4), d if ks else 0)
        g.begin('NL',body,t2,t3)
        g.v('v_rcp_f32', V(reg+13), V(reg+12))
        g.dppmov(reg,reg+4,1); g.dppmov(reg,reg+8,2)
        if not g.cfg['safe']: g.v('v_max3_u32', V(CHK), V(CHK), V(reg+12), V(reg+13))
        g.v('v_mul_f32', V(reg+13), sRA, V(reg+13))
        g.v('v_mul_f32', V(reg), V(reg), V(reg+13))
        g.v('v_cvt_pk_bf16_f32', V(reg), V(reg), 0)
        g.dsw('ds_write_b16', V(PWA), V(reg,1), 0, wr=['p:o:PL'])
        g.v('v_add_u32', V(PWA), LS_SLOT, V(PWA))
        g.flush()

    def u_left(g, i, body, t0):
        g.begin('LEFT',body,t0,t0+10)
        g.dsr('ds_read_b128', V(KL,4), V(LQA), 512)
        g.dsr('ds_read_b64', V(KL+4,2), V(LQA), 512+16)
        g.v('v_mov_b32', V(PP+7), 0)
        g.flush()

    def u_s(g, body, t, t0, t1):
        g.begin(f'S{t}',body,t0,t1)
        reg=ACC+16*(t&1); q=QP[t] if t<3 else Q0
        kf=g.cfg['kfirst'][t]
        for ps in range(2):
            for a_ in (0,1,3,2):
                d=V(reg+4*a_,4); c=d if ps else (0 if a_<3 else V(MASK,4))
                if ps==kf: g.mfma(d, V(KP[a_],4), V(q,4), c)
                else: g.mfma(d, V(KP[a_]+4,2), V(q+4,2), c, k=16)
        if t==0:
            g.dsr('ds_read_b128', V(Q0,4), V(LQA), 0)
            g.dsr('ds_read_b64', V(Q0+4,2), V(LQA), 16)
        g.flush()
    def u_e(g, body, t, t0, t1):
        g.begin(f'E{t}',body,t0,t1)
        reg=ACC+16*(t&1)
        order=[0,1,2,3,4,5,6,7,12,8,9,10,11]
        if g.cfg['safe']:
            TM0=reg+13; TM1=reg+14
            g.v('v_max3_f32', V(TM0), V(reg), V(reg+1), V(reg+2))
            for r in range(3,13,2): g.v('v_max3_f32', V(TM0), V(TM0), V(reg+r), V(reg+r+1))
            for n in (16,32):
                g.v('v_mov_b32', V(TM1), V(TM0))
                g.swap(n, V(TM0), V(TM1))
                g.v('v_max_f32', V(TM0), V(TM0), V(TM1))
            for r in order: g.v('v_sub_f32', V(reg+r), V(reg+r), V(TM0))
        for r in order: g.v('v_exp_f32', V(reg+r), V(reg+r))
        for r in range(6): g.v('v_cvt_pk_bf16_f32', V(PP+r), V(reg+2*r), V(reg+2*r+1))
        g.v('v_cvt_pk_bf16_f32', V(PP+6), V(reg+12), 0)
        g.flush()
    def u_pv(g, body, t, t0, t1):
        g.begin(f'PV{t}',body,t0,t1)
        reg=ACC+16*(t&1)
        for ks in range(2):
            d=V(reg+12,4); g.mfma(d, V(ONES,4), V(PP+4*ks,4), d if ks else 0)
            for dt in range(3):
                d=V(reg+4*dt,4); g.mfma(d, V(VP+8*dt+4*ks,4), V(PP+4*ks,4), d if ks else 0)
        g.flush()
    def u_n(g, body, t, t0, t1):
        g.begin(f'N{t}',body,t0,t1)
        reg=ACC+16*(t&1)
        g.v('v_rcp_f32', V(reg+13), V(reg+12))
        if not g.cfg['safe']: g.v('v_max3_u32', V(CHK), V(CHK), V(reg+12), V(reg+13))
        g.v('v_mul_f32', V(reg+13), sRA, V(reg+13))
        for r in range(6):
            g.v('v_mul_f32', V(reg+2*r), V(reg+2*r), V(reg+13))
            g.v('v_mul_f32', V(reg+2*r+1), V(reg+2*r+1), V(reg+13))
            g.v('v_cvt_pk_bf16_f32', V(reg+r), V(reg+2*r), V(reg+2*r+1))
            if r==3: g.dsw('ds_write_b128', V(FW1), V(reg,4), L_O-FB+6144*t, rd=['p:Ofree'], wr=[f'p:Ow{t}a']+(['p:o:BC'] if t==0 else []))
        g.dsw('ds_write_b64', V(FW2), V(reg+4,2), L_O-FB+6144*t, rd=['p:Ofree'], wr=[f'p:Ow{t}b'])
        g.flush()
    def u_d(g, i, body, t, t0, t1, te0, te1):
        p=i&1
        g.begin(f'D{t}',body,t0,t1)
        bufs=[HF,HF+4,ACC+32]
        for k in range(6):
            ob=V(bufs[(k+2)%3],4)
            g.dsr('ds_read_b128', ob, V(FRA), L_O-FB+6144*t+1024*k, rd=[f'p:Ook{t}'], wr=[f'p:Or{t}_{k}'])
            for c in range(3):
                d=V(X0[p]+12*t+4*c,4); g.mfma(d, Wo(c,k), ob, d)
        g.begin(f'DE{t}',body,te0,te1)
        for c in range(3):
            b=X0[p]+12*t+4*c; o=(Q0+2*c,K0+2*c,VP+8*c+2)[t]
            g.v('v_cvt_pk_bf16_f32', V(o), V(b), V(b+1))
            g.v('v_cvt_pk_bf16_f32', V(o+1), V(b+2), V(b+3))
            g.bstore('buffer_store_dwordx2', V(o,2), V(STA+t), SRO, sO[p], 32*c, flags=g.cfg['stflags'], rd=['p:o:ST'], wr=['p:o:ST']).ta=64
        g.flush()

    def body(g, i):
        T=g.cfg['times']
        ok=lambda w: 0<=w<NWIN
        merge=g.cfg['mergebx']
        xw=[f'p:Xw{R}' for R in range(9)]
        if ok(i-1) or (merge and ok(i+1)):
            g.begin('BO2',i,T['bo2'],T['bo2'])
            g.barrier(rd=['p:Ow2a','p:Ow2b']+(xw if merge else []), wr=['p:Ook2']+(['p:Xok'] if merge else []))
        if ok(i-1): g.u_d(i-1,i,2,*T['d2'])
        if ok(i):
            g.begin('SO',i,T['so'],T['so']); g.s('s_mov_b32', sO[i&1], OOB if g.cfg.get('nost') else sB[i&1]); g.flush()
        if ok(i+1):
            if not merge:
                g.begin('BX',i,T['bx'],T['bx']); g.barrier(rd=xw, wr=['p:Xok'])
            g.u_conv(i+1,i,*T['conv'])
            g.u_stat(i+1,i,T['stat'])
        if -1<=i<NWIN: g.u_bs(i,T['bs'])
        if ok(i+2): g.u_dma(i+2,i,*T['dma'])
        if ok(i+3): g.u_wc(i+3,i,*T['dma'])
        if ok(i+1): g.u_norm(i+1,i,T['norm'])
        hw=[f'p:Hw{t}{x}' for t in range(3) for x in 'ab']
        if ok(i):
            g.u_qkv(i,i,*T['qkv'])
            g.u_left(i,i,T['left'])
            g.u_s(i,0,*T['s0']); g.u_s(i,1,*T['s1'])
            g.u_q2(i,i,*T['q2'])
            g.u_e(i,0,*T['e0']); g.u_pv(i,0,*T['pv0'])
            g.u_e(i,1,*T['e1']); g.u_pv(i,1,*T['pv1'])
            g.u_n(i,0,*T['n0']); g.u_s(i,2,*T['s2'])
            g.u_n(i,1,*T['n1']); g.u_sl(i,*T['sl'])
        if -1<=i<NWIN:
            g.begin('BO01',i,T['bo01'],T['bo01'])
            g.barrier(rd=['p:Ow0a','p:Ow0b','p:Ow1a','p:Ow1b']+hw, wr=['p:Ook0','p:Ook1','p:Hok'])
            g.flush()
        if ok(i):
            g.u_d(i,i,0,*T['d0'])
            g.u_e(i,2,*T['e2']); g.u_pv(i,2,*T['pv2'])
            g.u_pvl(i,*T['pvl'])
            g.u_d(i,i,1,*T['d1'])
            g.u_n(i,2,*T['n2'])
        g.flush()

TIMES=dict(
  bo2=-30, d2=(0,70,75,100), so=0, bx=60,
  conv=(70,330), stat=[(160,210),(250,300),(330,380),(380,405)], bs=410, dma=(415,560),
  norm=[(415,470),(490,550),(550,610),(610,670)],
  qkv=(70,690), left=600,
  s0=(690,720), s1=(720,750), q2=(750,890), e0=(730,800), pv0=(890,920), e1=(800,900), pv1=(920,950),
  n0=(920,960), s2=(960,990), n1=(970,1010), sl=(1010,1040,1045,1055), bo01=1015,
  d0=(1040,1110,1140,1150), e2=(1020,1080), pv2=(1080,1100), pvl=(1120,1150,1190,1200), d1=(1150,1240,1245,1260),
  n2=(1110,1160))
def load_tuned(cfg, fn):
    import json
    c=json.load(open(fn)); T=dict(TIMES)
    for k,v in c['t'].items(): T[k]=tuple(v)+tuple(TIMES[k][2:])
    cfg['times']=T; cfg['sp']=c['sp']; cfg.update(c['opt'])
CFG=dict(period=1250, times=TIMES, safe=False, ldflags=' nt', stflags='', rlead=40, sched=True, mergebx=True, kfirst=[0,1,0,1], dmata=40, dmalat=250, pf=0, pfflags=' nt')

def main_stream(cfg):
    g=Gen(cfg)
    for i in range(0,NWIN+1): g.body(i)
    ref=g.ins
    if not cfg['sched']:
        segs={}
        for i in ref: segs.setdefault(i.win,[]).append(i)
        order=[segs[k] for k in sorted(segs)]
    else:
        g2=Gen(cfg)
        nb=8
        for i in range(-1,nb): g2.body(i)
        o=schedule(g2.ins, **cfg.get('sp',{}))
        cut=cfg.get('cut',('QKV1',30))
        pos={(i.uid,i.win):n for n,i in enumerate(o)}
        tm={(i.uid,i.win):i.t for i in o}
        if cfg.get('verbose'): print("cut times", [tm[(cut,b)] for b in range(0,nb)], file=sys.stderr)
        order=None
        for b in (4,3,5,2):
            a0,a1=pos[(cut,b)],pos[(cut,b+1)]
            tpl=[(i.uid,i.win-b) for i in o[a0:a1]]
            uids=[u for u,_ in tpl]
            full=set(i.uid for i in g2.ins if i.win==3)
            if len(set(uids))!=len(uids) or set(uids)!=full:
                print("template not periodic at",b,len(uids),len(full), file=sys.stderr); continue
            by={(i.uid,i.win):i for i in ref}
            order=[]
            for sg in range(-3,NWIN+3):
                seg=[by[(u,sg+off)] for u,off in tpl if (u,sg+off) in by]
                if seg: order.append(seg)
            flat=[i for sg in order for i in sg]
            if len(flat)==len(ref) and check_order(ref,flat): break
            order=None
        assert order is not None, "no valid template"
    build_deps(ref)
    flat=[]
    for n,sg in enumerate(order):
        x=I(f"@seg{n}",'X'); x.preds={}; x.tag='seg'; flat.append(x); flat+=sg
    fin,tot=finalize(flat); stall=0
    segs=[]
    for i in fin:
        if i.tag=='seg': segs.append([])
        else: segs[-1].append(i)
    if cfg.get('verbose'):
        st=[i.t for i in fin if i.tag=='seg']
        print("segment start slots",st,"total",tot,"stall",stall, file=sys.stderr)
        mid=segs[len(segs)//2]
        from collections import Counter
        print(Counter(i.kind+(':'+i.tag if i.tag else '') for i in mid), file=sys.stderr)
    return segs

def emit_main(segs, label, st0='', st1='', fine=None):
    T=["\n".join(i.text for i in sg) for sg in segs]
    n=len(T)
    per=[k for k in range(n-2) if T[k]==T[k+2]]
    a0=per[0]; b0=a0
    while b0 in per: b0+=1
    b0+=2
    reps=(b0-a0)//2
    out=[]
    for k in range(a0): out.append(T[k])
    out.append(f"{st0}s_mov_b32 {txt(sCNT)}, {reps}\n.p2align 3\n{label}_loop:")
    if fine:
        sg=segs[a0]; t0=sg[0].t; L=[]; k=0; info=[]
        for n_,i in enumerate(sg):
            L.append(i.text)
            if k<len(fine) and i.t-t0>=fine[k] and i.kind=='M' and n_+1<len(sg) and sg[n_+1].kind not in 'sB':
                L.append(f"s_memtime s[{56+2*k}:{57+2*k}]"); info.append((i.t-t0,i.uid)); k+=1
        print("FINE",info,file=sys.stderr)
        out.append("; FINE "+" ".join(str(4*x[0]) for x in info))
        out.append("\n".join(L))
    else: out.append(T[a0])
    out.append(T[a0+1])
    out.append(f"s_sub_u32 {txt(sCNT)}, {txt(sCNT)}, 1\ns_cmp_lg_u32 {txt(sCNT)}, 0\ns_cbranch_scc1 {label}_loop\n{st1}")
    for sg in (segs[a0], segs[a0+2*reps]):
        for i in sg:
            if 'scc' in i.rd: raise SystemExit("scc live across loop edge")
            if 'scc' in i.wr: break
    for k in range(a0+2*reps,n): out.append(T[k])
    print(f"{label}: {n} segments, peel {a0}, loop x{reps}, tail {n-a0-2*reps}", file=sys.stderr)
    return "\n".join(out)

if __name__=="__main__":
    cfg=dict(CFG); cfg['verbose']=True
    if len(sys.argv)>1: load_tuned(cfg,sys.argv[1])
    segs=main_stream(cfg)
    s=emit_main(segs,"F")
    open("main.txt","w").write("\n".join(f"{i.t:6d} {i.uid[0] if i.uid else '':6s} {i.text}" for i in segs[10]))
```

```python
import re
VOP3_ONLY=('v_cvt_pk_bf16_f32','v_fma_f32','v_max3','v_mfma','v_smfmac','v_mul_lo','v_mul_hi','v_add3','v_lshl_add','v_lshl_or','v_and_or','v_pk_','v_or3','v_accvgpr','v_mbcnt','v_readlane')
FLEX=('v_add_f32','v_mul_f32','v_fmac_f32','v_exp_f32','v_rcp_f32','v_rsq_f32','v_max_f32','v_sub_f32','v_mov_b32','v_and_b32')
def has_lit(t):
    ops=[x.strip() for x in t.split(None,1)[1].split(',')] if ' ' in t else []
    for o in ops:
        o=o.split()[0]
        try: v=int(o,0)
        except ValueError: continue
        if not -16<=v<=64: return True
    return False
def size(t):
    op=t.split()[0]
    if op.endswith(':'): return 0
    if op.startswith('v_cmp'): return 8 if has_lit(t) else 4
    if op.startswith(('ds_','buffer_','global_')): return 8
    if op.startswith(('s_waitcnt','s_nop','s_barrier','s_cbranch','s_branch')): return 4
    if op.startswith('s_memtime'): return 8
    if op.startswith('s_'): return 8 if has_lit(t) else 4
    if op.endswith('_e64') or op.endswith('_dpp') or op.startswith(VOP3_ONLY): return 8
    return 8 if has_lit(t) else 4
def flexible(t):
    op=t.split()[0]
    return op in FLEX and not has_lit(t)
def align(seg):
    n=len(seg); INF=10**9
    free=[False]*n
    for k in range(1,n):
        p=seg[k-1]; i=seg[k]
        if i.kind in 'VRWGM' and p.kind=='M' and p.mt!='K': free[k]=True
    dense=[0]*n
    for k in range(n):
        d=0
        if k>=1 and seg[k].t-seg[k-1].t<=1: d+=1
        if k>=2 and seg[k].t-seg[k-2].t<=2: d+=1
        if k>=3 and seg[k].t-seg[k-3].t<=3: d+=2
        dense[k]=d
    best=[[INF,INF] for _ in range(n+1)]; prev=[[None,None] for _ in range(n+1)]
    best[0][0]=0
    for k,i in enumerate(seg):
        sz=sum(size(x) for x in i.text.split('\n'))%8 or 8
        for par in (0,1):
            if best[k][par]>=INF: continue
            for nop in ((0,1) if free[k] else (0,)):
                for pro in ((0,1) if sz==4 and '\n' not in i.text and flexible(i.text) else (0,)):
                    p=par^nop; s_=8 if pro else sz
                    c=best[k][par]+nop*1.5+pro*0.6+(dense[k] if (s_==8 and p) else 0)
                    q=p^(1 if s_==4 else 0)
                    if c<best[k+1][q]: best[k+1][q]=c; prev[k+1][q]=(par,nop,pro)
    out=[]; par=0
    if best[n][0]>=INF: par=1
    ch=[]
    for k in range(n,0,-1):
        pp,nop,pro=prev[k][par]; ch.append((nop,pro)); par=pp
    ch.reverse()
    for i,(nop,pro) in zip(seg,ch):
        if nop: out.append('s_nop 0')
        t=i.text
        if pro:
            op,rest=t.split(None,1); t=op+'_e64 '+rest
        out.append(t)
    return out
```

```python
import sys, os, struct, re
from asmlib import *
import asmlib

NAME="standalone__window_attn_davit__vision"
ROW=196224; PIX=384; NB=100270464; NWIN=21
OOB=0x70000000
XROW=257*16; XPIX=25*16
L_X=0
L_H=[37120, 37120+18432+2048]
L_ST=L_H[0]+18432
L_O=L_H[1]+18432
L_LS=L_O+18432
LS_SLOT=1552
L_CA=L_LS+49152
L_FLAG=L_CA+19008
L_END=L_FLAG+64
LDS_BYTES=163840
assert L_END<=LDS_BYTES
FB=L_H[0]
X0=[0,36]
Q0,K0,Q1,Q2,K1,K2,KL=72,78,84,90,96,102,108
QP=[Q0,Q1,Q2]; KP=[K0,K1,K2,KL]
VP=114
ACC=138
PP=174
HF=182
ONES=190
a=194
CVA=a; a+=9
STA=a; a+=3
MASK=a; a+=1
assert MASK%2==0
MASK2=a; a+=1
DMF=a; a+=1
SWA=a; a+=1
FRA=a; a+=1
FW1=a; a+=1
FW2=a; a+=1
IDX=a; a+=1
PWA=a; a+=1
LQA=a; a+=1
PFA=a; a+=1
CAA=a; a+=1
CHK=a; a+=1
BRA=a; a+=1
XT=a; a+=4
assert a==224, a
DMV=PP+6
PL=Q1
def Wk(dt,k): return A(0+4*(dt*6+k),4)
def Wv(dt,k): return A(72+4*(dt*6+k),4)
def Wo(dt,k): return A(144+4*(dt*6+k),4)
def Wq(dt,k):
    n=dt*6+k
    return A(216+4*n,4) if n<10 else V(224+4*(n-10),4)
SRX=S(4,4); SRO=S(8,4); SRW=S(12,4); SRWO=S(16,4); SRDW=S(20,4); SRWS=S(24,4)
sW=S(32); sW0=S(33); sEND=S(34); sWID=S(35); sB=[S(36),S(37)]; sO=[S(38),S(39)]
sOFF=S(40); sT0=S(41); sT1=S(42); sT2=S(43); sMSK=S(44); sM0=S(45); sCNT=S(46); sMODE=S(47)
sINV=S(48); sEPS=S(49); sWSO=S(50); sT3=S(51); sPF=S(52); sWG=S(53); sMK0=S(72); sINV2=S(73); sRA=S(3); sN=S(50); sTOP=S(52)

LEFT=(4,2)
EVEN_L=[0,1,2,3,12,13,14,15]; ODD_L=[4,5,6,7,8,9,10,11]
def token_map():
    cls={}
    for c in range(7):
        for r in range(7):
            if (r,c)!=LEFT: cls.setdefault((r+9*c)%16,[]).append((r,c))
    tok=[[None]*16 for _ in range(3)]
    for res,lst in cls.items():
        assert len(lst)==3
        lst=sorted(lst)
        lane=(EVEN_L if res%2==0 else ODD_L)[res//2]
        for t in range(3): tok[t][lane]=lst[t]
    return tok
TOK=token_map()
CORN=[(0,0),(0,2),(2,0),(2,2)]; EDGE=[(0,1),(1,0),(1,2),(2,1)]

class Gen(Prog):
    def __init__(s, cfg):
        super().__init__(); s.cfg=cfg; s.unit=None; s.cnt=0; s.hook=None
        asmlib.LAT_LDS=cfg.get('lat',16)
    def begin(s, name, body, t0, t1):
        s.flush(); s.unit=(name, body, t0, t1, len(s.ins))
    def flush(s):
        if s.unit is None: return
        name,body,t0,t1,st=s.unit
        n=len(s.ins)-st
        for k,i in enumerate(s.ins[st:]):
            i.uid=(name,k); i.win=body
            i.prio=body*s.cfg['period']+t0+(t1-t0)*k/max(1,n-1)
            if i.kind=='R': i.prio-=s.cfg.get('rlead',40)
        s.unit=None

    def u_wc(g, i, body, t0, t1, fused=False, pf=True):
        g.begin('WC',body,t0,t1)
        g.s('s_mul_hi_u32', sT0, sWID, 58835169)
        g.s('s_mul_i32', sT1, sT0, 73)
        g.s('s_sub_u32', sT1, sWID, sT1)
        g.s('s_mul_i32', sT2, sT0, 7*ROW)
        g.s('s_mul_i32', sT3, sT1, 7*PIX)
        g.s('s_add_u32', sT2, sT2, sT3)
        g.s('s_cmp_lt_u32', None, sWID, sEND)
        g.s('s_cselect_b32', sN, sT2, OOB)
        g.s('s_add_u32', sWID, sWID, 32)
        g.s('s_cmp_eq_u32', None, sT1, 0)
        g.s('s_cselect_b32', sMSK, 0x1fffffff, sMK0)
        g.s('s_cmp_eq_u32', None, sT1, 72)
        g.s('s_cselect_b32', sMSK, 0x37ffffff, sMSK)
        g.s('s_cmp_eq_u32', None, sT0, 0)
        g.s('s_cselect_b32', sTOP, OOB, OOB if g.cfg.get('hotx') else sN)
        if fused: g.fuse(15)
        if pf and g.cfg['pf']:
            g.s('s_mov_b32', 'm0', L_X+225*16)
            g.s('s_max_u32', sOFF, sN, ROW+PIX)
            x=g.dma(V(PFA), SRX, sOFF, flags=g.cfg['pfflags'], rd=['p:o:DM'], wr=['p:o:DM'])
            x.text=x.text.replace('dwordx4','dword'); x.ta=64
            if fused: g.fuse(3)
        g.flush()
    def u_dma(g, i, body, t0, t1, fused=False):
        p=i&1
        g.begin('DMA',body,t0,t1)
        g.s('s_mov_b32', sB[p], sN)
        g.v('v_and_b32', V(DMV), sMSK, V(DMF))
        for R in range(9):
            g.s('s_add_u32', 'm0', sM0, R*XROW)
            if R>0: g.s('s_add_u32', sOFF, sM0 if g.cfg.get('hotx') else sB[p], R*ROW+(8*ROW if g.cfg.get('hotx') else 0))
            elif fused: g.raw('s_nop 0')
            x=g.dma(V(DMV), SRX, sOFF if R else sTOP, flags=g.cfg['ldflags'], rd=['p:Xfree','p:o:DM'], wr=[f'p:Xw{R}','p:o:DM'])
            x.ta=(16 if fused else g.cfg['dmata']); x.vlat=g.cfg['dmalat']
            if fused: g.fuse(3)
        g.flush()

    def conv_tile(g, c, t, kind, abuf, bbuf, x0, load):
        d=V(x0+12*t+4*c,4)
        if kind==0:
            load(V(bbuf,4), 2, t, c*32)
            g.mfma(d, V(abuf,4), V(bbuf,4), 0)
        else:
            load(V(bbuf,4), kind-1, t, c*32)
            load(V(bbuf+4,4), kind-1, t, c*32+16)
            g.smfmac(d, V(abuf,4), V(bbuf,8), V(IDX))

    def u_conv(g, i, body, t0, t1, areg=None):
        p=i&1
        g.begin('CONV',body,t0,t1)
        def load(d, pat, t, off): g.dsr('ds_read_b128', d, V(CVA+3*pat+t), off, rd=['p:Xok'])
        n=0; m=0
        for c in range(3):
            for kind in range(3):
                ab=PP+4*(m&1); m+=1
                if areg is None: g.dsr('ds_read_b128', V(ab,4), V(CAA), (c*3+kind)*528, rd=['p:o:CA'])
                else: ab=areg+4*(c*3+kind)
                for t in range(3):
                    bb=Q1+8*(n%3); n+=1
                    g.conv_tile(c,t,kind,ab,bb,X0[p],load)
        g.flush()

    def stat_acc(g, x0, c, t, s1, s2):
        b=x0+12*t+4*c
        if c==0:
            g.v('v_add_f32', V(s1), V(b), V(b+1))
            g.v('v_mul_f32', V(s2), V(b), V(b))
            g.v('v_add_f32', V(s1), V(s1), V(b+2))
            g.v('v_fmac_f32', V(s2), V(b+1), V(b+1), rmw=True)
            g.v('v_add_f32', V(s1), V(s1), V(b+3))
            g.v('v_fmac_f32', V(s2), V(b+2), V(b+2), rmw=True)
            g.v('v_fmac_f32', V(s2), V(b+3), V(b+3), rmw=True)
        else:
            for r in range(4):
                g.v('v_add_f32', V(s1), V(s1), V(b+r))
                g.v('v_fmac_f32', V(s2), V(b+r), V(b+r), rmw=True)

    def u_stat(g, i, body, times, ntile=3):
        p=i&1; x0=X0[p]
        sr=[VP+8*t+4 for t in range(3)]
        tmp=[VP+8*t+6 for t in range(3)]
        for c in range(3):
            g.begin(f'STAT{c}',body,*times[c])
            for t in range(ntile): g.stat_acc(x0,c,t,sr[t],sr[t]+1)
        g.begin('STATR',body,*times[3])
        for t in range(ntile):
            g.swap(16, V(sr[t]), V(sr[t]+1))
            g.v('v_add_f32', V(sr[t]), V(sr[t]), V(sr[t]+1))
        g.swap(32, V(sr[0]), V(sr[1]))
        g.v('v_add_f32', V(sr[0]), V(sr[0]), V(sr[1]))
        g.dsw('ds_write_b32', V(SWA), V(sr[0],1), 0, wr=['p:STw0'])
        if ntile==3:
            g.v('v_mov_b32', V(sr[2]+1), V(sr[2]))
            g.swap(32, V(sr[2]), V(sr[2]+1))
            g.v('v_add_f32', V(sr[2]), V(sr[2]), V(sr[2]+1))
            g.dsw('ds_write_b32', V(SWA), V(sr[2],1), 512, wr=['p:STw1'])
        g.flush()

    def u_bs(g, body, t):
        g.begin('BS',body,t,t)
        g.barrier(rd=['p:STw0','p:STw1']+[f'p:Or{t}_{k}' for t in range(3) for k in range(6)], wr=['p:STok','p:Xfree','p:Ofree'])
        g.flush()

    def u_norm(g, i, body, times, ntile=3, hbuf=None):
        p=i&1; x0=X0[p]
        if hbuf is None: hbuf=L_H[p]
        sr=[VP+8*t+4 for t in range(3)]
        g.begin('STATF',body,*times[0])
        SF=K2
        g.dsr('ds_read_b128', V(SF,4), V(FRA), L_ST-FB, rd=['p:STok'])
        g.dsr('ds_read_b128', V(SF+4,4), V(FRA), L_ST-FB+1024, rd=['p:STok'])
        g.v('v_add_f32', V(SF), V(SF), V(SF+1)); g.v('v_add_f32', V(SF+4), V(SF+4), V(SF+5))
        g.v('v_add_f32', V(SF+2), V(SF+2), V(SF+3)); g.v('v_add_f32', V(SF+6), V(SF+6), V(SF+7))
        g.v('v_add_f32', V(SF), V(SF), V(SF+2)); g.v('v_add_f32', V(SF+4), V(SF+4), V(SF+6))
        g.v('v_mul_f32', V(SF+1), sINV, V(SF))
        g.v('v_mul_f32', V(SF+2), sINV2, V(SF))
        g.v('v_mul_f32', V(SF+4), sINV2, V(SF+4))
        g.v('v_fma_f32', V(SF+4), ('neg',V(SF+1)), V(SF+2), V(SF+4))
        g.v('v_max_f32', V(SF+4), 0, V(SF+4))
        g.v('v_add_f32', V(SF+4), sEPS, V(SF+4))
        g.v('v_rsq_f32', V(SF), V(SF+4))
        g.v('v_mul_f32_e64', V(SF+1), ('neg',V(SF+1)), V(SF))
        g.dsw('ds_write_b64', V(FW1), V(SF,2), hbuf-FB, wr=['p:o:BC'])
        for t in range(ntile):
            g.dsr('ds_read_b64', V(sr[t],2), V(BRA), hbuf-FB+256*t, rd=['p:o:BC'])
        for t in range(ntile):
            g.begin(f'NORM{t}',body,*times[1+t])
            hp=[Q2,PP][t&1]; ft=XT
            n=0
            for c in range(3):
                for h in range(2):
                    b=x0+12*t+4*c+2*h; f=ft+2*(n%2); n+=1
                    g.v('v_fma_f32', V(f), V(b), V(sr[t]), V(sr[t]+1))
                    g.v('v_fma_f32', V(f+1), V(b+1), V(sr[t]), V(sr[t]+1))
                    g.v('v_cvt_pk_bf16_f32', V(hp+2*c+h), V(f), V(f+1))
                if c==1: g.dsw('ds_write_b128', V(FW1), V(hp,4), hbuf-FB+6144*t, wr=[f'p:Hw{t}a']+(['p:o:BC'] if t==0 else []))
            g.dsw('ds_write_b64', V(FW2), V(hp+4,2), hbuf-FB+6144*t, wr=[f'p:Hw{t}b'])
        g.flush()

    def u_qkv(g, i, body, t0, t1):
        p=i&1
        bd=[0,3/7,6/7,1]
        bd=[t0+(t1-t0)*x for x in bd]
        for t in range(3):
            g.begin(f'QKV{t}',body,bd[t],bd[t+1])
            for k in range(6):
                hb=V(HF+4*(k&1),4)
                g.dsr('ds_read_b128', hb, V(FRA), L_H[p]-FB+6144*t+1024*k, rd=['p:Hok'])
                for n in range(9):
                    if t==2 and n>=3: continue
                    d=V(ACC+4*n,4); c=d if k else 0
                    if n<3: g.mfma(d, Wk(n,k), hb, c)
                    elif n<6: g.mfma(d, Wq(n-3,k), hb, c)
                    else: g.mfma(d, hb, Wv(n-6,k), c)
            e=bd[t+1]
            g.begin(f'QKVC{t}',body,e-60,e-40)
            for n in range(9):
                if t==2 and n>=3: continue
                b=ACC+4*n
                dst = KP[t]+2*n if n<3 else (QP[t]+2*(n-3) if n<6 else VP+8*(n-6)+2*t)
                g.v('v_cvt_pk_bf16_f32', V(dst), V(b), V(b+1))
                g.v('v_cvt_pk_bf16_f32', V(dst+1), V(b+2), V(b+3))
        g.flush()

    def u_q2(g, i, body, t0, t1):
        p=i&1
        g.begin('Q2',body,t0,t1)
        acc=[Q2,ACC+32,XT]
        for k in range(6):
            hb=V(HF+4*(k&1),4)
            g.dsr('ds_read_b128', hb, V(FRA), L_H[p]-FB+6144*2+1024*k, rd=['p:Hok'])
            for n in range(3):
                d=V(VP+8*n+4,4); g.mfma(d, hb, Wv(n,k), d if k else 0)
            for n in range(3):
                d=V(acc[n],4); g.mfma(d, Wq(n,k), hb, d if k else 0)
        g.begin('Q2C',body,t1-30,t1-10)
        for n in range(3):
            b=VP+8*n+4
            g.v('v_cvt_pk_bf16_f32', V(b), V(b), V(b+1))
            g.v('v_cvt_pk_bf16_f32', V(b+1), V(b+2), V(b+3))
            g.dsr('ds_read_u16', V(b+2), V(PWA), 1024+8*n, rd=['p:o:LS'])
            g.v('v_mov_b32', V(b+3), 0)
        for n in range(3):
            b=acc[n]
            g.v('v_cvt_pk_bf16_f32', V(Q2+2*n), V(b), V(b+1))
            g.v('v_cvt_pk_bf16_f32', V(Q2+2*n+1), V(b+2), V(b+3))
        g.flush()

    def dppmov(g, d, s_, row):
        g.v('v_mov_b32_dpp', V(d), V(s_), rmw=True, extra=f' quad_perm:[0,1,2,3] row_mask:{hex(1<<row)} bank_mask:0xf')
    def u_sl(g, body, t0, t1, t2, t3):
        g.begin('SL',body,t0,t1)
        reg=ACC+16
        kf=g.cfg['kfirst'][3]
        for ps in range(2):
            for a_ in range(4):
                d=V(reg+4*a_,4); c=d if ps else (0 if a_<3 else V(MASK,4))
                if ps==kf: g.mfma(d, V(Q0,4), V(KP[a_],4), c)
                else: g.mfma(d, V(Q0+4,2), V(KP[a_]+4,2), c, k=16)
        g.begin('EL',body,t2,t3)
        g.dppmov(reg,reg+4,1); g.dppmov(reg,reg+8,2); g.dppmov(reg,reg+13,3)
        if g.cfg['safe']:
            m=reg+1; m2=reg+2
            g.v('v_mov_b32', V(m), V(reg))
            for r in (8,4,2,1): g.v('v_max_f32_dpp', V(m), V(m), V(m), extra=f' row_ror:{r} row_mask:0xf bank_mask:0xf')
            for n in (16,32):
                g.v('v_mov_b32', V(m2), V(m)); g.swap(n, V(m), V(m2)); g.v('v_max_f32', V(m), V(m), V(m2))
            g.v('v_sub_f32', V(reg), V(reg), V(m))
        g.v('v_exp_f32', V(reg), V(reg))
        g.v('v_cvt_pk_bf16_f32', V(reg), V(reg), 0)
        g.dsw('ds_write_b16', V(PWA), V(reg,1), 0, wr=['p:o:PL'])
        g.dsr('ds_read_b128', V(PL,4), V(LQA), 0, rd=['p:o:PL'])
        g.dsr('ds_read_b128', V(PL+4,4), V(LQA), 16, rd=['p:o:PL'])
        g.v('v_add_u32', V(LQA), LS_SLOT, V(LQA))
        g.flush()
    def u_pvl(g, body, t0, t1, t2, t3):
        g.begin('PVL',body,t0,t1)
        reg=ACC+16
        for ks in range(2):
            d=V(reg+12,4); g.mfma(d, V(PL+4*ks,4), V(ONES,4), d if ks else 0)
            for dt in range(3):
                d=V(reg+4*dt,4); g.mfma(d, V(PL+4*ks,4), V(VP+8*dt+4*ks,4), d if ks else 0)
        g.begin('NL',body,t2,t3)
        g.v('v_rcp_f32', V(reg+13), V(reg+12))
        g.dppmov(reg,reg+4,1); g.dppmov(reg,reg+8,2)
        if not g.cfg['safe']: g.v('v_max3_u32', V(CHK), V(CHK), V(reg+12), V(reg+13))
        g.v('v_mul_f32', V(reg+13), sRA, V(reg+13))
        g.v('v_mul_f32', V(reg), V(reg), V(reg+13))
        g.v('v_cvt_pk_bf16_f32', V(reg), V(reg), 0)
        g.dsw('ds_write_b16', V(PWA), V(reg,1), 0, wr=['p:o:PL']+(['p:LAST1'] if body==NWIN-1 else []))
        g.v('v_add_u32', V(PWA), LS_SLOT, V(PWA))
        g.flush()

    def u_left(g, i, body, t0):
        g.begin('LEFT',body,t0,t0+10)
        g.dsr('ds_read_b128', V(KL,4), V(LQA), 512, rd=['p:o:LS'])
        g.dsr('ds_read_b64', V(KL+4,2), V(LQA), 512+16, rd=['p:o:LS'])
        g.v('v_mov_b32', V(PP+7), 0)
        g.flush()

    def u_s(g, body, t, t0, t1):
        g.begin(f'S{t}',body,t0,t1)
        reg=ACC+16*(t&1); q=QP[t] if t<3 else Q0
        kf=g.cfg['kfirst'][t]
        for ps in range(2):
            for a_ in (0,1,3,2):
                d=V(reg+4*a_,4); c=d if ps else (0 if a_<3 else V(MASK,4))
                if ps==kf: g.mfma(d, V(KP[a_],4), V(q,4), c)
                else: g.mfma(d, V(KP[a_]+4,2), V(q+4,2), c, k=16)
        if t==0:
            g.dsr('ds_read_b128', V(Q0,4), V(LQA), 0, rd=['p:o:LS'])
            g.dsr('ds_read_b64', V(Q0+4,2), V(LQA), 16, rd=['p:o:LS'])
        g.flush()
    def u_e(g, body, t, t0, t1):
        g.begin(f'E{t}',body,t0,t1)
        reg=ACC+16*(t&1)
        order=[0,1,2,3,4,5,6,7,12,8,9,10,11]
        if g.cfg['safe']:
            TM0=reg+13; TM1=reg+14
            g.v('v_max3_f32', V(TM0), V(reg), V(reg+1), V(reg+2))
            for r in range(3,13,2): g.v('v_max3_f32', V(TM0), V(TM0), V(reg+r), V(reg+r+1))
            for n in (16,32):
                g.v('v_mov_b32', V(TM1), V(TM0))
                g.swap(n, V(TM0), V(TM1))
                g.v('v_max_f32', V(TM0), V(TM0), V(TM1))
            for r in order: g.v('v_sub_f32', V(reg+r), V(reg+r), V(TM0))
        for r in order: g.v('v_exp_f32', V(reg+r), V(reg+r))
        for r in range(6): g.v('v_cvt_pk_bf16_f32', V(PP+r), V(reg+2*r), V(reg+2*r+1))
        g.v('v_cvt_pk_bf16_f32', V(PP+6), V(reg+12), 0)
        g.flush()
    def u_pv(g, body, t, t0, t1):
        g.begin(f'PV{t}',body,t0,t1)
        reg=ACC+16*(t&1)
        for ks in range(2):
            d=V(reg+12,4); g.mfma(d, V(ONES,4), V(PP+4*ks,4), d if ks else 0)
            for dt in range(3):
                d=V(reg+4*dt,4); g.mfma(d, V(VP+8*dt+4*ks,4), V(PP+4*ks,4), d if ks else 0)
        g.flush()
    def u_n(g, body, t, t0, t1):
        g.begin(f'N{t}',body,t0,t1)
        reg=ACC+16*(t&1)
        g.v('v_rcp_f32', V(reg+13), V(reg+12))
        if not g.cfg['safe']: g.v('v_max3_u32', V(CHK), V(CHK), V(reg+12), V(reg+13))
        g.v('v_mul_f32', V(reg+13), sRA, V(reg+13))
        for r in range(6):
            g.v('v_mul_f32', V(reg+2*r), V(reg+2*r), V(reg+13))
            g.v('v_mul_f32', V(reg+2*r+1), V(reg+2*r+1), V(reg+13))
            g.v('v_cvt_pk_bf16_f32', V(reg+r), V(reg+2*r), V(reg+2*r+1))
            if r==3: g.dsw('ds_write_b128', V(FW1), V(reg,4), L_O-FB+6144*t, rd=['p:Ofree'], wr=[f'p:Ow{t}a'])
        g.dsw('ds_write_b64', V(FW2), V(reg+4,2), L_O-FB+6144*t, rd=['p:Ofree'], wr=[f'p:Ow{t}b'])
        g.flush()
    def u_d(g, i, body, t, t0, t1, te0, te1):
        p=i&1
        g.begin(f'D{t}',body,t0,t1)
        bufs=[HF,HF+4,ACC+32]
        for k in range(6):
            ob=V(bufs[(k+2)%3],4)
            g.dsr('ds_read_b128', ob, V(FRA), L_O-FB+6144*t+1024*k, rd=[f'p:Ook{t}'], wr=[f'p:Or{t}_{k}'])
            for c in range(3):
                d=V(X0[p]+12*t+4*c,4); g.mfma(d, Wo(c,k), ob, d)
        g.begin(f'DE{t}',body,te0,te1)
        for c in range(3):
            b=X0[p]+12*t+4*c; o=(Q0+2*c,K0+2*c,VP+8*c+2)[t]
            g.v('v_cvt_pk_bf16_f32', V(o), V(b), V(b+1))
            g.v('v_cvt_pk_bf16_f32', V(o+1), V(b+2), V(b+3))
            x=g.bstore('buffer_store_dwordx2', V(o,2), V(STA+t), SRO, sO[p], 32*c, flags=g.cfg['stflags'], rd=['p:o:ST'], wr=['p:o:ST']); x.ta=64
            if g.cfg.get('hackst'): x.text=x.text.replace(f' offset:{32*c}',f' offset:{512*c}')
        g.flush()

    def body(g, i):
        T=g.cfg['times']
        ok=lambda w: 0<=w<NWIN
        merge=g.cfg['mergebx']
        xw=[f'p:Xw{R}' for R in range(9)]
        if ok(i-1) or (merge and ok(i+1)):
            g.begin('BO2',i,T['bo2'],T['bo2'])
            g.barrier(rd=['p:Ow2a','p:Ow2b','p:LAST1','p:LAST2']+(xw if merge else []), wr=['p:Ook2']+(['p:Xok'] if merge else []))
        if ok(i-1): g.u_d(i-1,i,2,*T['d2'])
        if g.hook: g.hook(g,i,'d2')
        if ok(i):
            g.begin('SO',i,T['so'],T['so']); g.s('s_mov_b32', sO[i&1], OOB if g.cfg.get('nost') else sB[i&1]); g.flush()
        if ok(i+1):
            if not merge:
                g.begin('BX',i,T['bx'],T['bx']); g.barrier(rd=xw, wr=['p:Xok'])
            g.u_conv(i+1,i,*T['conv'])
            g.u_stat(i+1,i,T['stat'])
        if -1<=i<NWIN: g.u_bs(i,T['bs'])
        if ok(i+2): g.u_wc(i+2,i,*T['dma']); g.u_dma(i+2,i,*T['dma'])
        if ok(i+1): g.u_norm(i+1,i,T['norm'])
        hw=[f'p:Hw{t}{x}' for t in range(3) for x in 'ab']
        if ok(i):
            g.u_qkv(i,i,*T['qkv'])
            g.u_left(i,i,T['left'])
            g.u_s(i,0,*T['s0']); g.u_s(i,1,*T['s1'])
            g.u_q2(i,i,*T['q2'])
            g.u_e(i,0,*T['e0']); g.u_pv(i,0,*T['pv0'])
            g.u_e(i,1,*T['e1']); g.u_pv(i,1,*T['pv1'])
            g.u_n(i,0,*T['n0']); g.u_s(i,2,*T['s2'])
            g.u_n(i,1,*T['n1']); g.u_sl(i,*T['sl'])
        if -1<=i<NWIN:
            g.begin('BO01',i,T['bo01'],T['bo01'])
            g.barrier(rd=['p:Ow0a','p:Ow0b','p:Ow1a','p:Ow1b']+hw, wr=['p:Ook0','p:Ook1','p:Hok'])
            g.flush()
        if ok(i):
            g.u_d(i,i,0,*T['d0'])
            g.u_e(i,2,*T['e2']); g.u_pv(i,2,*T['pv2'])
            g.u_pvl(i,*T['pvl'])
            g.u_d(i,i,1,*T['d1'])
            g.u_n(i,2,*T['n2'])
        if g.hook: g.hook(g,i,'end')
        g.flush()

TIMES=dict(
  bo2=-30, d2=(0,70,75,100), so=0, bx=60,
  conv=(70,330), stat=[(160,210),(250,300),(330,380),(380,405)], bs=410, dma=(415,560),
  norm=[(415,470),(490,550),(550,610),(610,670)],
  qkv=(70,690), left=600,
  s0=(690,720), s1=(720,750), q2=(750,890), e0=(730,800), pv0=(890,920), e1=(800,900), pv1=(920,950),
  n0=(920,960), s2=(960,990), n1=(970,1010), sl=(1010,1040,1045,1055), bo01=1015,
  d0=(1040,1110,1140,1150), e2=(1020,1080), pv2=(1080,1100), pvl=(1120,1150,1190,1200), d1=(1150,1240,1245,1260),
  n2=(1110,1160))
def load_tuned(cfg, fn):
    import json
    c=json.load(open(fn)); T=dict(TIMES)
    for k,v in c['t'].items(): T[k]=tuple(v)+tuple(TIMES[k][2:])
    cfg['times']=T; cfg['sp']=c['sp']; cfg.update(c['opt'])
CFG=dict(period=1250, times=TIMES, safe=False, ldflags=' nt', stflags='', rlead=40, sched=True, mergebx=True, kfirst=[0,1,0,1], dmata=40, dmalat=250, pf=0, pfflags=' nt')

def template(cfg):
    g2=Gen(cfg); nb=8
    for i in range(-1,nb): g2.body(i)
    o=schedule(g2.ins, **cfg.get('sp',{}))
    cut=cfg.get('cut',('QKV1',30))
    pos={(i.uid,i.win):n for n,i in enumerate(o)}
    tm={(i.uid,i.win):i.t for i in o}
    if cfg.get('verbose'): print("cut times", [tm[(cut,b)] for b in range(0,nb)], file=sys.stderr)
    full=set(i.uid for i in g2.ins if i.win==3)
    for b in (4,3,5,2):
        a0,a1=pos[(cut,b)],pos[(cut,b+1)]
        tpl=[(i.uid,i.win-b) for i in o[a0:a1]]
        uids=[u for u,_ in tpl]
        if len(set(uids))==len(uids) and set(uids)==full: return tpl
        print("template not periodic at",b,len(uids),len(full), file=sys.stderr)
    raise SystemExit("no valid template")

def segments(ins, tpl):
    by={(i.uid,i.win):i for i in ins}
    order=[]
    for sg in range(-3,NWIN+3):
        seg=[by.pop((u,sg+off)) for u,off in tpl if (u,sg+off) in by]
        if seg: order.append(seg)
    return order, [i for i in ins if (i.uid,i.win) in by]

def fin_segments(ref, order, cfg):
    flat=[i for sg in order for i in sg]
    assert len(flat)==len(ref) and check_order(ref,flat)
    flat=[]
    for n,sg in enumerate(order):
        x=I(f"@seg{n}",'X'); x.preds={}; x.tag='seg'; flat.append(x); flat+=sg
    fin,tot=finalize(flat)
    segs=[]
    for i in fin:
        if i.tag=='seg': segs.append([])
        else: segs[-1].append(i)
    if cfg.get('verbose'):
        print("segment start slots",[i.t for i in fin if i.tag=='seg'],"total",tot, file=sys.stderr)
        from collections import Counter
        print(Counter(i.kind+(':'+i.tag if i.tag else '') for i in segs[len(segs)//2]), file=sys.stderr)
    return segs

def main_stream(cfg):
    g=Gen(cfg)
    for i in range(0,NWIN+1): g.body(i)
    order,rest=segments(g.ins, template(cfg))
    return fin_segments(g.ins, order, cfg)

def emit_main(segs, label, st0='', st1='', fine=None, doalign=True, pad=""):
    from align import align
    T=["\n".join(i.text for i in sg) for sg in segs]
    n=len(T)
    per=[k for k in range(n-2) if T[k]==T[k+2]]
    a0=per[0]; drain=''
    core=lambda sg:[i.text for i in sg if i.tag not in ('wait','nop')]
    vmw=lambda sg:[int(x) for i in sg if i.tag=='wait' for x in re.findall(r'vmcnt\((\d+)\)',i.text)]
    if a0>0 and core(segs[a0-1])==core(segs[a0+1]):
        va,vb=vmw(segs[a0-1]),vmw(segs[a0+1])
        if len(va)==len(vb)==1 and vb[0]<=va[0]:
            a0-=1; per=[a0]+per; segs=list(segs); segs[a0]=segs[a0+2]; drain="s_waitcnt lgkmcnt(0)\ns_nop 6\n"
    b0=a0
    while b0 in per: b0+=1
    b0+=2
    reps=(b0-a0)//2
    def mk(text,t):
        x=I(text,'s'); x.t=t; return x
    def em(sg): return "\n".join(align(sg)) if doalign else "\n".join(i.text for i in sg)
    out=[".p2align 3"]
    for k in range(a0): out.append(em(segs[k]))
    out.append(f"{drain}{st0}s_mov_b32 {txt(sCNT)}, {reps-1}\n.p2align 6\n{pad}{label}_loop:")
    s0=list(segs[a0]); s1=list(segs[a0+1])
    if fine:
        t0=s0[0].t; L=[]; k=0; info=[]
        for n_,i in enumerate(s0):
            L.append(i)
            if k<len(fine) and i.t-t0>=fine[k] and i.kind=='M' and i.mt!='K' and n_+1<len(s0) and s0[n_+1].kind not in 'sB':
                L.append(mk(f"s_memtime s[{58+2*k}:{59+2*k}]",i.t+1)); info.append((i.t-t0,i.uid)); k+=1
        print("FINE",info,file=sys.stderr)
        out.append("; FINE "+" ".join(str(4*x[0]) for x in info))
        s0=L
    pos=len(s1)
    for k in range(len(s1)-1,0,-1):
        if 'scc' in s1[k].wr or 'scc' in s1[k].rd: break
        if s1[k-1].kind=='M' and s1[k-1].mt!='K' and s1[k].kind not in 'sB': pos=k; break
    s1.insert(pos,mk(f"s_sub_u32 {txt(sCNT)}, {txt(sCNT)}, 1",s1[pos-1].t+1))
    s1.append(mk(f"s_cbranch_scc0 {label}_loop",s1[-1].t+1))
    out.append(em(s0)); out.append(em(s1))
    if st1: out.append(st1+".p2align 3")
    for sg in (segs[a0], segs[a0+2*reps]):
        for i in sg:
            if 'scc' in i.rd: raise SystemExit("scc live across loop edge")
            if 'scc' in i.wr: break
    for k in range(a0+2*reps,n): out.append(em(segs[k]))
    print(f"{label}: {n} segments, peel {a0}, loop x{reps}, tail {n-a0-2*reps}", file=sys.stderr)
    return "\n".join(out)

if __name__=="__main__":
    cfg=dict(CFG); cfg['verbose']=True
    if len(sys.argv)>1: load_tuned(cfg,sys.argv[1])
    segs=main_stream(cfg)
    s=emit_main(segs,"F")
    open("main.txt","w").write("\n".join(f"{i.t:6d} {i.uid[0] if i.uid else '':6s} {i.text}" for i in segs[10]))
```

```python
import sys, os, struct, re
from asmlib import *
import asmlib

NAME="standalone__window_attn_davit__vision"
ROW=196224; PIX=384; NB=100270464; NWIN=21
OOB=0x70000000
XROW=257*16; XPIX=25*16
L_X=0
L_H=[37120, 37120+18432+2048]
L_ST=L_H[0]+18432
L_O=L_H[1]+18432
L_LS=L_O+18432
LS_SLOT=1552
L_CA=L_LS+49152
L_FLAG=L_CA+19008
L_END=L_FLAG+64
LDS_BYTES=163840
assert L_END<=LDS_BYTES
FB=L_H[0]
X0=[0,36]
Q0,K0,Q1,Q2,K1,K2,KL=72,78,84,90,96,102,108
QP=[Q0,Q1,Q2]; KP=[K0,K1,K2,KL]
VP=114
ACC=138
PP=174
HF=182
ONES=190
a=194
CVA=a; a+=9
STA=a; a+=3
MASK=a; a+=1
assert MASK%2==0
MASK2=a; a+=1
DMF=a; a+=1
SWA=a; a+=1
FRA=a; a+=1
FW1=a; a+=1
FW2=a; a+=1
IDX=a; a+=1
PWA=a; a+=1
LQA=a; a+=1
PFA=a; a+=1
CAA=a; a+=1
CHK=a; a+=1
BRA=a; a+=1
XT=a; a+=4
assert a==224, a
DMV=PP+6
PL=Q1
def Wk(dt,k): return A(0+4*(dt*6+k),4)
def Wv(dt,k): return A(72+4*(dt*6+k),4)
def Wo(dt,k): return A(144+4*(dt*6+k),4)
def Wq(dt,k):
    n=dt*6+k
    return A(216+4*n,4) if n<10 else V(224+4*(n-10),4)
SRX=S(4,4); SRO=S(8,4); SRW=S(12,4); SRWO=S(16,4); SRDW=S(20,4); SRWS=S(24,4)
sW=S(32); sW0=S(33); sEND=S(34); sWID=S(35); sB=[S(36),S(37)]; sO=[S(38),S(39)]
sOFF=S(40); sT0=S(41); sT1=S(42); sT2=S(43); sMSK=S(44); sM0=S(45); sCNT=S(46); sMODE=S(47)
sINV=S(48); sEPS=S(49); sWSO=S(50); sT3=S(51); sPF=S(52); sWG=S(53); sMK0=S(72); sINV2=S(73); sRA=S(3); sN=S(50); sTOP=S(52)

LEFT=(4,2)
EVEN_L=[0,1,2,3,12,13,14,15]; ODD_L=[4,5,6,7,8,9,10,11]
def token_map():
    cls={}
    for c in range(7):
        for r in range(7):
            if (r,c)!=LEFT: cls.setdefault((r+9*c)%16,[]).append((r,c))
    tok=[[None]*16 for _ in range(3)]
    for res,lst in cls.items():
        assert len(lst)==3
        lst=sorted(lst)
        lane=(EVEN_L if res%2==0 else ODD_L)[res//2]
        for t in range(3): tok[t][lane]=lst[t]
    return tok
TOK=token_map()
CORN=[(0,0),(0,2),(2,0),(2,2)]; EDGE=[(0,1),(1,0),(1,2),(2,1)]

class Gen(Prog):
    def __init__(s, cfg):
        super().__init__(); s.cfg=cfg; s.unit=None; s.cnt=0; s.hook=None
        asmlib.LAT_LDS=cfg.get('lat',16)
    def begin(s, name, body, t0, t1):
        s.flush(); s.unit=(name, body, t0, t1, len(s.ins))
    def flush(s):
        if s.unit is None: return
        name,body,t0,t1,st=s.unit
        n=len(s.ins)-st
        for k,i in enumerate(s.ins[st:]):
            i.uid=(name,k); i.win=body
            i.prio=body*s.cfg['period']+t0+(t1-t0)*k/max(1,n-1)
            if i.kind=='R': i.prio-=s.cfg.get('rlead',40)
        s.unit=None

    def u_wc(g, i, body, t0, t1, fused=False, pf=True):
        g.begin('WC',body,t0,t1)
        g.s('s_mul_hi_u32', sT0, sWID, 58835169)
        g.s('s_mul_i32', sT1, sT0, 73)
        g.s('s_sub_u32', sT1, sWID, sT1)
        g.s('s_mul_i32', sT2, sT0, 7*ROW)
        g.s('s_mul_i32', sT3, sT1, 7*PIX)
        g.s('s_add_u32', sT2, sT2, sT3)
        g.s('s_cmp_lt_u32', None, sWID, sEND)
        g.s('s_cselect_b32', sN, sT2, OOB)
        g.s('s_add_u32', sWID, sWID, 32)
        g.s('s_cmp_eq_u32', None, sT1, 0)
        g.s('s_cselect_b32', sMSK, 0x1fffffff, sMK0)
        g.s('s_cmp_eq_u32', None, sT1, 72)
        g.s('s_cselect_b32', sMSK, 0x37ffffff, sMSK)
        g.s('s_cmp_eq_u32', None, sT0, 0)
        g.s('s_cselect_b32', sTOP, OOB, OOB if g.cfg.get('hotx') else sN)
        if fused: g.fuse(15)
        if pf and g.cfg['pf']:
            g.s('s_mov_b32', 'm0', L_X+225*16)
            g.s('s_max_u32', sOFF, sN, ROW+PIX)
            x=g.dma(V(PFA), SRX, sOFF, flags=g.cfg['pfflags'], rd=['p:o:DM'], wr=['p:o:DM'])
            x.text=x.text.replace('dwordx4','dword'); x.ta=64
            if fused: g.fuse(3)
        g.flush()
    def u_dma(g, i, body, t0, t1, fused=False):
        p=i&1
        g.begin('DMA',body,t0,t1)
        g.s('s_mov_b32', sB[p], sN)
        g.v('v_and_b32', V(DMV), sMSK, V(DMF))
        for R in range(9):
            g.s('s_add_u32', 'm0', sM0, R*XROW)
            if R>0: g.s('s_add_u32', sOFF, sM0 if g.cfg.get('hotx') else sB[p], R*ROW+(8*ROW if g.cfg.get('hotx') else 0))
            elif fused: g.raw('s_nop 0')
            x=g.dma(V(DMV), SRX, sOFF if R else sTOP, flags=g.cfg['ldflags'], rd=['p:Xfree','p:o:DM'], wr=[f'p:Xw{R}','p:o:DM'])
            x.ta=(16 if fused else g.cfg['dmata']); x.vlat=g.cfg['dmalat']
            if fused: g.fuse(3)
        g.flush()

    def conv_tile(g, c, t, kind, abuf, bbuf, x0, load):
        d=V(x0+12*t+4*c,4)
        if kind==0:
            load(V(bbuf,4), 2, t, c*32)
            g.mfma(d, V(abuf,4), V(bbuf,4), 0)
        else:
            load(V(bbuf,4), kind-1, t, c*32)
            load(V(bbuf+4,4), kind-1, t, c*32+16)
            g.smfmac(d, V(abuf,4), V(bbuf,8), V(IDX))

    def u_conv(g, i, body, t0, t1, areg=None):
        p=i&1
        g.begin('CONV',body,t0,t1)
        def load(d, pat, t, off): g.dsr('ds_read_b128', d, V(CVA+3*pat+t), off, rd=['p:Xok'])
        n=0; m=0
        for c in range(3):
            for kind in range(3):
                ab=PP+4*(m&1); m+=1
                if areg is None: g.dsr('ds_read_b128', V(ab,4), V(CAA), (c*3+kind)*528, rd=['p:o:CA'])
                else: ab=areg+4*(c*3+kind)
                for t in range(3):
                    bb=Q1+8*(n%3); n+=1
                    g.conv_tile(c,t,kind,ab,bb,X0[p],load)
        g.flush()

    def stat_acc(g, x0, c, t, s1, s2):
        b=x0+12*t+4*c
        if c==0:
            g.v('v_add_f32', V(s1), V(b), V(b+1))
            g.v('v_mul_f32', V(s2), V(b), V(b))
            g.v('v_add_f32', V(s1), V(s1), V(b+2))
            g.v('v_fmac_f32', V(s2), V(b+1), V(b+1), rmw=True)
            g.v('v_add_f32', V(s1), V(s1), V(b+3))
            g.v('v_fmac_f32', V(s2), V(b+2), V(b+2), rmw=True)
            g.v('v_fmac_f32', V(s2), V(b+3), V(b+3), rmw=True)
        else:
            for r in range(4):
                g.v('v_add_f32', V(s1), V(s1), V(b+r))
                g.v('v_fmac_f32', V(s2), V(b+r), V(b+r), rmw=True)

    def u_stat(g, i, body, times, ntile=3):
        p=i&1; x0=X0[p]
        sr=[VP+8*t+4 for t in range(3)]
        tmp=[VP+8*t+6 for t in range(3)]
        for c in range(3):
            g.begin(f'STAT{c}',body,*times[c])
            for t in range(ntile): g.stat_acc(x0,c,t,sr[t],sr[t]+1)
        g.begin('STATR',body,*times[3])
        for t in range(ntile):
            g.swap(16, V(sr[t]), V(sr[t]+1))
            g.v('v_add_f32', V(sr[t]), V(sr[t]), V(sr[t]+1))
        g.swap(32, V(sr[0]), V(sr[1]))
        g.v('v_add_f32', V(sr[0]), V(sr[0]), V(sr[1]))
        g.dsw('ds_write_b32', V(SWA), V(sr[0],1), 0, wr=['p:STw0'])
        if ntile==3:
            g.v('v_mov_b32', V(sr[2]+1), V(sr[2]))
            g.swap(32, V(sr[2]), V(sr[2]+1))
            g.v('v_add_f32', V(sr[2]), V(sr[2]), V(sr[2]+1))
            g.dsw('ds_write_b32', V(SWA), V(sr[2],1), 512, wr=['p:STw1'])
        g.flush()

    def u_bs(g, body, t):
        g.begin('BS',body,t,t)
        g.barrier(rd=['p:STw0','p:STw1']+[f'p:Or{t}_{k}' for t in range(3) for k in range(6)], wr=['p:STok','p:Xfree','p:Ofree'])
        g.flush()

    def u_norm(g, i, body, times, ntile=3, hbuf=None):
        p=i&1; x0=X0[p]
        if hbuf is None: hbuf=L_H[p]
        sr=[VP+8*t+4 for t in range(3)]
        g.begin('STATF',body,*times[0])
        SF=K2
        g.dsr('ds_read_b128', V(SF,4), V(FRA), L_ST-FB, rd=['p:STok'])
        g.dsr('ds_read_b128', V(SF+4,4), V(FRA), L_ST-FB+1024, rd=['p:STok'])
        g.v('v_add_f32', V(SF), V(SF), V(SF+1)); g.v('v_add_f32', V(SF+4), V(SF+4), V(SF+5))
        g.v('v_add_f32', V(SF+2), V(SF+2), V(SF+3)); g.v('v_add_f32', V(SF+6), V(SF+6), V(SF+7))
        g.v('v_add_f32', V(SF), V(SF), V(SF+2)); g.v('v_add_f32', V(SF+4), V(SF+4), V(SF+6))
        g.v('v_mul_f32', V(SF+1), sINV, V(SF))
        g.v('v_mul_f32', V(SF+2), sINV2, V(SF))
        g.v('v_mul_f32', V(SF+4), sINV2, V(SF+4))
        g.v('v_fma_f32', V(SF+4), ('neg',V(SF+1)), V(SF+2), V(SF+4))
        g.v('v_max_f32', V(SF+4), 0, V(SF+4))
        g.v('v_add_f32', V(SF+4), sEPS, V(SF+4))
        g.v('v_rsq_f32', V(SF), V(SF+4))
        g.v('v_mul_f32_e64', V(SF+1), ('neg',V(SF+1)), V(SF))
        g.dsw('ds_write_b64', V(FW1), V(SF,2), hbuf-FB, wr=['p:o:BC'])
        for t in range(ntile):
            g.dsr('ds_read_b64', V(sr[t],2), V(BRA), hbuf-FB+256*t, rd=['p:o:BC'])
        for t in range(ntile):
            g.begin(f'NORM{t}',body,*times[1+t])
            hp=[Q2,PP][t&1]; ft=XT
            n=0
            for c in range(3):
                for h in range(2):
                    b=x0+12*t+4*c+2*h; f=ft+2*(n%2); n+=1
                    g.v('v_fma_f32', V(f), V(b), V(sr[t]), V(sr[t]+1))
                    g.v('v_fma_f32', V(f+1), V(b+1), V(sr[t]), V(sr[t]+1))
                    g.v('v_cvt_pk_bf16_f32', V(hp+2*c+h), V(f), V(f+1))
                if c==1: g.dsw('ds_write_b128', V(FW1), V(hp,4), hbuf-FB+6144*t, wr=[f'p:Hw{t}a']+(['p:o:BC'] if t==0 else []))
            g.dsw('ds_write_b64', V(FW2), V(hp+4,2), hbuf-FB+6144*t, wr=[f'p:Hw{t}b'])
        g.flush()

    def u_qkv(g, i, body, t0, t1):
        p=i&1
        bd=[0,3/7,6/7,1]
        bd=[t0+(t1-t0)*x for x in bd]
        for t in range(3):
            g.begin(f'QKV{t}',body,bd[t],bd[t+1])
            for k in range(6):
                hb=V(HF+4*(k&1),4)
                g.dsr('ds_read_b128', hb, V(FRA), L_H[p]-FB+6144*t+1024*k, rd=['p:Hok'])
                for n in range(9):
                    if t==2 and n>=3: continue
                    d=V(ACC+4*n,4); c=d if k else 0
                    if n<3: g.mfma(d, Wk(n,k), hb, c)
                    elif n<6: g.mfma(d, Wq(n-3,k), hb, c)
                    else: g.mfma(d, hb, Wv(n-6,k), c)
            e=bd[t+1]
            g.begin(f'QKVC{t}',body,e-60,e-40)
            for n in range(9):
                if t==2 and n>=3: continue
                b=ACC+4*n
                dst = KP[t]+2*n if n<3 else (QP[t]+2*(n-3) if n<6 else VP+8*(n-6)+2*t)
                g.v('v_cvt_pk_bf16_f32', V(dst), V(b), V(b+1))
                g.v('v_cvt_pk_bf16_f32', V(dst+1), V(b+2), V(b+3))
        g.flush()

    def u_q2(g, i, body, t0, t1):
        p=i&1
        g.begin('Q2',body,t0,t1)
        acc=[Q2,ACC+32,XT]
        for k in range(6):
            hb=V(HF+4*(k&1),4)
            g.dsr('ds_read_b128', hb, V(FRA), L_H[p]-FB+6144*2+1024*k, rd=['p:Hok'])
            for n in range(3):
                d=V(VP+8*n+4,4); g.mfma(d, hb, Wv(n,k), d if k else 0)
            for n in range(3):
                d=V(acc[n],4); g.mfma(d, Wq(n,k), hb, d if k else 0)
        g.begin('Q2C',body,t1-30,t1-10)
        for n in range(3):
            b=VP+8*n+4
            g.v('v_cvt_pk_bf16_f32', V(b), V(b), V(b+1))
            g.v('v_cvt_pk_bf16_f32', V(b+1), V(b+2), V(b+3))
            g.dsr('ds_read_u16', V(b+2), V(PWA), 1024+8*n, rd=['p:o:LS'])
            g.v('v_mov_b32', V(b+3), 0)
        for n in range(3):
            b=acc[n]
            g.v('v_cvt_pk_bf16_f32', V(Q2+2*n), V(b), V(b+1))
            g.v('v_cvt_pk_bf16_f32', V(Q2+2*n+1), V(b+2), V(b+3))
        g.flush()

    def dppmov(g, d, s_, row):
        g.v('v_mov_b32_dpp', V(d), V(s_), rmw=True, extra=f' quad_perm:[0,1,2,3] row_mask:{hex(1<<row)} bank_mask:0xf')
    def u_sl(g, body, t0, t1, t2, t3):
        g.begin('SL',body,t0,t1)
        reg=ACC+16
        kf=g.cfg['kfirst'][3]
        for ps in range(2):
            for a_ in range(4):
                d=V(reg+4*a_,4); c=d if ps else (0 if a_<3 else V(MASK,4))
                if ps==kf: g.mfma(d, V(Q0,4), V(KP[a_],4), c)
                else: g.mfma(d, V(Q0+4,2), V(KP[a_]+4,2), c, k=16)
        g.begin('EL',body,t2,t3)
        g.dppmov(reg,reg+4,1); g.dppmov(reg,reg+8,2); g.dppmov(reg,reg+13,3)
        if g.cfg['safe']:
            m=reg+1; m2=reg+2
            g.v('v_mov_b32', V(m), V(reg))
            for r in (8,4,2,1): g.v('v_max_f32_dpp', V(m), V(m), V(m), extra=f' row_ror:{r} row_mask:0xf bank_mask:0xf')
            for n in (16,32):
                g.v('v_mov_b32', V(m2), V(m)); g.swap(n, V(m), V(m2)); g.v('v_max_f32', V(m), V(m), V(m2))
            g.v('v_sub_f32', V(reg), V(reg), V(m))
        g.v('v_exp_f32', V(reg), V(reg))
        g.v('v_cvt_pk_bf16_f32', V(reg), V(reg), 0)
        g.dsw('ds_write_b16', V(PWA), V(reg,1), 0, wr=['p:o:PL'])
        g.dsr('ds_read_b128', V(PL,4), V(LQA), 0, rd=['p:o:PL'])
        g.dsr('ds_read_b128', V(PL+4,4), V(LQA), 16, rd=['p:o:PL'])
        g.v('v_add_u32', V(LQA), LS_SLOT, V(LQA))
        g.flush()
    def u_pvl(g, body, t0, t1, t2, t3):
        g.begin('PVL',body,t0,t1)
        reg=ACC+16
        for ks in range(2):
            d=V(reg+12,4); g.mfma(d, V(PL+4*ks,4), V(ONES,4), d if ks else 0)
            for dt in range(3):
                d=V(reg+4*dt,4); g.mfma(d, V(PL+4*ks,4), V(VP+8*dt+4*ks,4), d if ks else 0)
        g.begin('NL',body,t2,t3)
        g.v('v_rcp_f32', V(reg+13), V(reg+12))
        g.dppmov(reg,reg+4,1); g.dppmov(reg,reg+8,2)
        if not g.cfg['safe']: g.v('v_max3_u32', V(CHK), V(CHK), V(reg+12), V(reg+13))
        g.v('v_mul_f32', V(reg+13), sRA, V(reg+13))
        g.v('v_mul_f32', V(reg), V(reg), V(reg+13))
        g.v('v_cvt_pk_bf16_f32', V(reg), V(reg), 0)
        g.dsw('ds_write_b16', V(PWA), V(reg,1), 0, wr=['p:o:PL']+(['p:LAST1'] if body==NWIN-1 else []))
        g.v('v_add_u32', V(PWA), LS_SLOT, V(PWA))
        g.flush()

    def u_left(g, i, body, t0):
        g.begin('LEFT',body,t0,t0+10)
        g.dsr('ds_read_b128', V(KL,4), V(LQA), 512, rd=['p:o:LS'])
        g.dsr('ds_read_b64', V(KL+4,2), V(LQA), 512+16, rd=['p:o:LS'])
        g.v('v_mov_b32', V(PP+7), 0)
        g.flush()

    def u_s(g, body, t, t0, t1):
        g.begin(f'S{t}',body,t0,t1)
        reg=ACC+16*(t&1); q=QP[t] if t<3 else Q0
        kf=g.cfg['kfirst'][t]
        for ps in range(2):
            for a_ in (0,1,3,2):
                d=V(reg+4*a_,4); c=d if ps else (0 if a_<3 else V(MASK,4))
                if ps==kf: g.mfma(d, V(KP[a_],4), V(q,4), c)
                else: g.mfma(d, V(KP[a_]+4,2), V(q+4,2), c, k=16)
        if t==0:
            g.dsr('ds_read_b128', V(Q0,4), V(LQA), 0, rd=['p:o:LS'])
            g.dsr('ds_read_b64', V(Q0+4,2), V(LQA), 16, rd=['p:o:LS'])
        g.flush()
    def u_e(g, body, t, t0, t1):
        g.begin(f'E{t}',body,t0,t1)
        reg=ACC+16*(t&1)
        order=[0,1,2,3,4,5,6,7,12,8,9,10,11]
        if g.cfg['safe']:
            TM0=reg+13; TM1=reg+14
            g.v('v_max3_f32', V(TM0), V(reg), V(reg+1), V(reg+2))
            for r in range(3,13,2): g.v('v_max3_f32', V(TM0), V(TM0), V(reg+r), V(reg+r+1))
            for n in (16,32):
                g.v('v_mov_b32', V(TM1), V(TM0))
                g.swap(n, V(TM0), V(TM1))
                g.v('v_max_f32', V(TM0), V(TM0), V(TM1))
            for r in order: g.v('v_sub_f32', V(reg+r), V(reg+r), V(TM0))
        for r in order: g.v('v_exp_f32', V(reg+r), V(reg+r))
        for r in range(6): g.v('v_cvt_pk_bf16_f32', V(PP+r), V(reg+2*r), V(reg+2*r+1))
        g.v('v_cvt_pk_bf16_f32', V(PP+6), V(reg+12), 0)
        g.flush()
    def u_pv(g, body, t, t0, t1):
        g.begin(f'PV{t}',body,t0,t1)
        reg=ACC+16*(t&1)
        for ks in range(2):
            d=V(reg+12,4); g.mfma(d, V(ONES,4), V(PP+4*ks,4), d if ks else 0)
            for dt in range(3):
                d=V(reg+4*dt,4); g.mfma(d, V(VP+8*dt+4*ks,4), V(PP+4*ks,4), d if ks else 0)
        g.flush()
    def u_n(g, body, t, t0, t1):
        g.begin(f'N{t}',body,t0,t1)
        reg=ACC+16*(t&1)
        g.v('v_rcp_f32', V(reg+13), V(reg+12))
        if not g.cfg['safe']: g.v('v_max3_u32', V(CHK), V(CHK), V(reg+12), V(reg+13))
        g.v('v_mul_f32', V(reg+13), sRA, V(reg+13))
        for r in range(6):
            g.v('v_mul_f32', V(reg+2*r), V(reg+2*r), V(reg+13))
            g.v('v_mul_f32', V(reg+2*r+1), V(reg+2*r+1), V(reg+13))
            g.v('v_cvt_pk_bf16_f32', V(reg+r), V(reg+2*r), V(reg+2*r+1))
            if r==3: g.dsw('ds_write_b128', V(FW1), V(reg,4), L_O-FB+6144*t, rd=['p:Ofree'], wr=[f'p:Ow{t}a'])
        g.dsw('ds_write_b64', V(FW2), V(reg+4,2), L_O-FB+6144*t, rd=['p:Ofree'], wr=[f'p:Ow{t}b'])
        g.flush()
    def u_d(g, i, body, t, t0, t1, te0, te1):
        p=i&1
        g.begin(f'D{t}',body,t0,t1)
        bufs=[HF,HF+4,ACC+32]
        for k in range(6):
            ob=V(bufs[(k+2)%3],4)
            g.dsr('ds_read_b128', ob, V(FRA), L_O-FB+6144*t+1024*k, rd=[f'p:Ook{t}'], wr=[f'p:Or{t}_{k}'])
            for c in range(3):
                d=V(X0[p]+12*t+4*c,4); g.mfma(d, Wo(c,k), ob, d)
        g.begin(f'DE{t}',body,te0,te1)
        for c in range(3):
            b=X0[p]+12*t+4*c; o=(Q0+2*c,K0+2*c,VP+8*c+2)[t]
            g.v('v_cvt_pk_bf16_f32', V(o), V(b), V(b+1))
            g.v('v_cvt_pk_bf16_f32', V(o+1), V(b+2), V(b+3))
            x=g.bstore('buffer_store_dwordx2', V(o,2), V(STA+t), SRO, sO[p], 32*c, flags=g.cfg['stflags'], rd=['p:o:ST'], wr=['p:o:ST']); x.ta=64
            if g.cfg.get('hackst'): x.text=x.text.replace(f' offset:{32*c}',f' offset:{512*c}')
        g.flush()

    def body(g, i):
        T=g.cfg['times']
        ok=lambda w: 0<=w<NWIN
        merge=g.cfg['mergebx']
        xw=[f'p:Xw{R}' for R in range(9)]
        if ok(i-1) or (merge and ok(i+1)):
            g.begin('BO2',i,T['bo2'],T['bo2'])
            g.barrier(rd=['p:Ow2a','p:Ow2b','p:LAST1','p:LAST2']+(xw if merge else []), wr=['p:Ook2']+(['p:Xok'] if merge else []))
        if ok(i-1): g.u_d(i-1,i,2,*T['d2'])
        if g.hook: g.hook(g,i,'d2')
        if ok(i):
            g.begin('SO',i,T['so'],T['so']); g.s('s_mov_b32', sO[i&1], OOB if g.cfg.get('nost') else sB[i&1]); g.flush()
        if ok(i+1):
            if not merge:
                g.begin('BX',i,T['bx'],T['bx']); g.barrier(rd=xw, wr=['p:Xok'])
            g.u_conv(i+1,i,*T['conv'])
            g.u_stat(i+1,i,T['stat'])
        if -1<=i<NWIN: g.u_bs(i,T['bs'])
        if ok(i+2): g.u_wc(i+2,i,*T['dma']); g.u_dma(i+2,i,*T['dma'])
        if ok(i+1): g.u_norm(i+1,i,T['norm'])
        hw=[f'p:Hw{t}{x}' for t in range(3) for x in 'ab']
        if ok(i):
            g.u_qkv(i,i,*T['qkv'])
            g.u_left(i,i,T['left'])
            g.u_s(i,0,*T['s0']); g.u_s(i,1,*T['s1'])
            g.u_q2(i,i,*T['q2'])
            g.u_e(i,0,*T['e0']); g.u_pv(i,0,*T['pv0'])
            g.u_e(i,1,*T['e1']); g.u_pv(i,1,*T['pv1'])
            g.u_n(i,0,*T['n0']); g.u_s(i,2,*T['s2'])
            g.u_n(i,1,*T['n1']); g.u_sl(i,*T['sl'])
        if -1<=i<NWIN:
            g.begin('BO01',i,T['bo01'],T['bo01'])
            g.barrier(rd=['p:Ow0a','p:Ow0b','p:Ow1a','p:Ow1b']+hw, wr=['p:Ook0','p:Ook1','p:Hok'])
            g.flush()
        if ok(i):
            g.u_d(i,i,0,*T['d0'])
            g.u_e(i,2,*T['e2']); g.u_pv(i,2,*T['pv2'])
            g.u_pvl(i,*T['pvl'])
            g.u_d(i,i,1,*T['d1'])
            g.u_n(i,2,*T['n2'])
        if g.hook: g.hook(g,i,'end')
        g.flush()

TIMES=dict(
  bo2=-30, d2=(0,70,75,100), so=0, bx=60,
  conv=(70,330), stat=[(160,210),(250,300),(330,380),(380,405)], bs=410, dma=(415,560),
  norm=[(415,470),(490,550),(550,610),(610,670)],
  qkv=(70,690), left=600,
  s0=(690,720), s1=(720,750), q2=(750,890), e0=(730,800), pv0=(890,920), e1=(800,900), pv1=(920,950),
  n0=(920,960), s2=(960,990), n1=(970,1010), sl=(1010,1040,1045,1055), bo01=1015,
  d0=(1040,1110,1140,1150), e2=(1020,1080), pv2=(1080,1100), pvl=(1120,1150,1190,1200), d1=(1150,1240,1245,1260),
  n2=(1110,1160))
def load_tuned(cfg, fn):
    import json
    c=json.load(open(fn)); T=dict(TIMES)
    for k,v in c['t'].items(): T[k]=tuple(v)+tuple(TIMES[k][2:])
    cfg['times']=T; cfg['sp']=c['sp']; cfg.update(c['opt'])
CFG=dict(period=1250, times=TIMES, safe=False, ldflags=' nt', stflags='', rlead=40, sched=True, mergebx=True, kfirst=[0,1,0,1], dmata=40, dmalat=250, pf=0, pfflags=' nt')

def template(cfg):
    g2=Gen(cfg); nb=8
    for i in range(-1,nb): g2.body(i)
    o=schedule(g2.ins, **cfg.get('sp',{}))
    cut=cfg.get('cut',('QKV1',30))
    pos={(i.uid,i.win):n for n,i in enumerate(o)}
    tm={(i.uid,i.win):i.t for i in o}
    if cfg.get('verbose'): print("cut times", [tm[(cut,b)] for b in range(0,nb)], file=sys.stderr)
    full=set(i.uid for i in g2.ins if i.win==3)
    for b in (4,3,5,2):
        a0,a1=pos[(cut,b)],pos[(cut,b+1)]
        tpl=[(i.uid,i.win-b) for i in o[a0:a1]]
        uids=[u for u,_ in tpl]
        if len(set(uids))==len(uids) and set(uids)==full: return tpl
        print("template not periodic at",b,len(uids),len(full), file=sys.stderr)
    raise SystemExit("no valid template")

def segments(ins, tpl):
    by={(i.uid,i.win):i for i in ins}
    order=[]
    for sg in range(-3,NWIN+3):
        seg=[by.pop((u,sg+off)) for u,off in tpl if (u,sg+off) in by]
        if seg: order.append(seg)
    return order, [i for i in ins if (i.uid,i.win) in by]

def fin_segments(ref, order, cfg):
    flat=[i for sg in order for i in sg]
    assert len(flat)==len(ref) and check_order(ref,flat)
    flat=[]
    for n,sg in enumerate(order):
        x=I(f"@seg{n}",'X'); x.preds={}; x.tag='seg'; flat.append(x); flat+=sg
    fin,tot=finalize(flat)
    segs=[]
    for i in fin:
        if i.tag=='seg': segs.append([])
        else: segs[-1].append(i)
    if cfg.get('verbose'):
        print("segment start slots",[i.t for i in fin if i.tag=='seg'],"total",tot, file=sys.stderr)
        from collections import Counter
        print(Counter(i.kind+(':'+i.tag if i.tag else '') for i in segs[len(segs)//2]), file=sys.stderr)
    return segs

def main_stream(cfg):
    g=Gen(cfg)
    for i in range(0,NWIN+1): g.body(i)
    order,rest=segments(g.ins, template(cfg))
    return fin_segments(g.ins, order, cfg)

def emit_main(segs, label, st0='', st1='', fine=None, doalign=True, pad="", pft=None):
    from align import align
    T=["\n".join(i.text for i in sg) for sg in segs]
    n=len(T)
    per=[k for k in range(n-2) if T[k]==T[k+2]]
    a0=per[0]; drain=''
    core=lambda sg:[i.text for i in sg if i.tag not in ('wait','nop')]
    vmw=lambda sg:[int(x) for i in sg if i.tag=='wait' for x in re.findall(r'vmcnt\((\d+)\)',i.text)]
    if a0>0 and core(segs[a0-1])==core(segs[a0+1]):
        va,vb=vmw(segs[a0-1]),vmw(segs[a0+1])
        if len(va)==len(vb)==1 and vb[0]<=va[0]:
            a0-=1; per=[a0]+per; segs=list(segs); segs[a0]=segs[a0+2]; drain="s_waitcnt lgkmcnt(0)\ns_nop 6\n"
    b0=a0
    while b0 in per: b0+=1
    b0+=2
    reps=(b0-a0)//2
    def mk(text,t):
        x=I(text,'s'); x.t=t; return x
    def em(sg): return "\n".join(align(sg)) if doalign else "\n".join(i.text for i in sg)
    out=[".p2align 3"]
    for k in range(a0): out.append(em(segs[k]))
    if pft: drain+=f"v_subrev_u32 v{PFA}, {FB}, v{FW1}\nv_lshlrev_b32 v{PFA}, 3, v{PFA}\n"
    out.append(f"{drain}{st0}s_mov_b32 {txt(sCNT)}, {reps-1}\n.p2align 6\n{pad}{label}_loop:")
    s0=list(segs[a0]); s1=list(segs[a0+1])
    if fine:
        t0=s0[0].t; L=[]; k=0; info=[]
        for n_,i in enumerate(s0):
            L.append(i)
            if k<len(fine) and i.t-t0>=fine[k] and i.kind=='M' and i.mt!='K' and n_+1<len(s0) and s0[n_+1].kind not in 'sB':
                L.append(mk(f"s_memtime s[{58+2*k}:{59+2*k}]",i.t+1)); info.append((i.t-t0,i.uid)); k+=1
        print("FINE",info,file=sys.stderr)
        out.append("; FINE "+" ".join(str(4*x[0]) for x in info))
        s0=L
    pos=len(s1)
    for k in range(len(s1)-1,0,-1):
        if 'scc' in s1[k].wr or 'scc' in s1[k].rd: break
        if s1[k-1].kind=='M' and s1[k-1].mt!='K' and s1[k].kind not in 'sB': pos=k; break
    s1.insert(pos,mk(f"s_sub_u32 {txt(sCNT)}, {txt(sCNT)}, 1",s1[pos-1].t+1))
    s1.append(mk(f"s_cbranch_scc0 {label}_loop",s1[-1].t+1))
    out.append(em(s0))
    if pft:
        for i in segs[a0+1]:
            if 'scc' in i.rd: raise SystemExit("scc live at mid-loop")
            if 'scc' in i.wr: break
        out.append(f"s_cmp_eq_u32 {txt(sCNT)}, {pft}\ns_cbranch_scc1 {label}_pf\n{label}_nopf:")
    out.append(em(s1))
    out.append(f"{label}_tail:")
    if st1: out.append(st1+".p2align 3")
    for sg in (segs[a0], segs[a0+2*reps]):
        for i in sg:
            if 'scc' in i.rd: raise SystemExit("scc live across loop edge")
            if 'scc' in i.wr: break
    for k in range(a0+2*reps,n): out.append(em(segs[k]))
    print(f"{label}: {n} segments, peel {a0}, loop x{reps}, tail {n-a0-2*reps}", file=sys.stderr)
    return "\n".join(out)

if __name__=="__main__":
    cfg=dict(CFG); cfg['verbose']=True
    if len(sys.argv)>1: load_tuned(cfg,sys.argv[1])
    segs=main_stream(cfg)
    s=emit_main(segs,"F")
    open("main.txt","w").write("\n".join(f"{i.t:6d} {i.uid[0] if i.uid else '':6s} {i.text}" for i in segs[10]))
```

```python
import re, heapq
from collections import defaultdict

def rng(prefix, a, n):
    return [f"{prefix}{a+i}" for i in range(n)]
def V(a, n=1): return ('v', a, n)
def A(a, n=1): return ('a', a, n)
def S(a, n=1): return ('s', a, n)
def txt(r):
    if isinstance(r, tuple):
        p, a, n = r
        return f"{p}{a}" if n == 1 else f"{p}[{a}:{a+n-1}]"
    return str(r)
def regs(r):
    if isinstance(r, tuple):
        return rng(r[0], r[1], r[2])
    if r in ('vcc', 'm0', 'exec', 'scc'): return [r]
    return []
def sub(r, off, n=1): return (r[0], r[1]+off, n)

class I:
    __slots__ = ('text','kind','rd','wr','mc','cost','cnt','uid','win','prio','lds','trans','perm','preds','succs','idx','t','arr','npred','early','wide','tag','ta','lb','vlat','mt','gap','slack','mb')
    def __init__(s, text, kind, rd=(), wr=(), mc=(), cost=1, cnt=None, lds=0, trans=False, perm=False, wide=()):
        s.text=text; s.kind=kind; s.rd=list(rd); s.wr=list(wr); s.mc=list(mc); s.cost=cost; s.cnt=cnt
        s.lds=lds; s.trans=trans; s.perm=perm; s.uid=None; s.win=None; s.prio=0.0; s.early=None; s.wide=list(wide); s.tag=''; s.ta=16; s.gap=0; s.slack=64; s.mb=0; s.vlat=None; s.mt=('K' if '16x16x16' in text else 'Z' if 'smfmac' in text else 'M') if kind=='M' else ('P' if text.startswith('v_pk_') else None)
    def __repr__(s): return f"<{s.kind} {s.text}>"

TRANS = ('v_exp_f32','v_rcp_f32','v_rsq_f32','v_log_f32','v_sqrt_f32')
class Prog:
    def __init__(s):
        s.ins=[]
    def add(s, i): s.ins.append(i); return i
    def mfma(s, d, a, b, c, k=32):
        op = {32:'v_mfma_f32_16x16x32_bf16', 16:'v_mfma_f32_16x16x16_bf16'}[k]
        return s.add(I(f"{op} {txt(d)}, {txt(a)}, {txt(b)}, {txt(c)}", 'M', regs(a)+regs(b)+regs(c), regs(d), mc=regs(c)))
    def smfmac(s, d, a, b, idx):
        return s.add(I(f"v_smfmac_f32_16x16x64_bf16 {txt(d)}, {txt(a)}, {txt(b)}, {txt(idx)}", 'M', regs(a)+regs(b)+regs(idx)+regs(d), regs(d), mc=regs(d)))
    def v(s, op, d, *src, rmw=False, extra='', rd=(), wr=()):
        r=[]; t=[]
        for x in src:
            if isinstance(x, tuple) and x[0]=='neg':
                r+=regs(x[1]); t.append('-'+txt(x[1]))
            else:
                r+=regs(x); t.append(txt(x))
        if rmw: r+=regs(d)
        base=op.replace('_e32','').replace('_e64','')
        tr = base in TRANS
        return s.add(I(f"{op} {txt(d)}, {', '.join(t)}{extra}", 'V', r+list(rd)+['exec'], regs(d)+list(wr), cost=2 if tr else 1, trans=tr))
    def swap(s, n, a, b):
        return s.add(I(f"v_permlane{n}_swap_b32 {txt(a)}, {txt(b)}", 'V', regs(a)+regs(b)+['exec'], regs(a)+regs(b), cost=2, perm=True))
    def dsr(s, op, d, addr, off=0, rd=(), wr=(), lds=None):
        if lds is None: lds={'ds_read_b128':4,'ds_read_b64':2,'ds_read_b32':2,'ds_read_u16':2,'ds_read_b64_tr_b16':2}[op]
        assert 0<=off<65536, off
        o=f" offset:{off}" if off else ""
        return s.add(I(f"{op} {txt(d)}, {txt(addr)}{o}", 'R', regs(addr)+list(rd)+['exec'], regs(d)+list(wr), cnt='lgkm', lds=lds))
    def dsw(s, op, addr, data, off=0, rd=(), wr=()):
        n=data[2]; lds={1:4,2:7,4:13}[n]
        assert 0<=off<65536, off
        o=f" offset:{off}" if off else ""
        return s.add(I(f"{op} {txt(addr)}, {txt(data)}{o}", 'W', regs(addr)+regs(data)+list(rd)+['exec'], list(wr), cost=n+1, cnt='lgkm', lds=lds))
    def bload(s, op, d, voff, srd, soff, off=0, flags='', rd=(), wr=()):
        assert 0<=off<4096
        o=f" offset:{off}" if off else ""
        return s.add(I(f"{op} {txt(d)}, {txt(voff)}, {txt(srd)}, {txt(soff)} offen{o}{flags}", 'G', regs(voff)+regs(srd)+regs(soff)+list(rd)+['exec'], regs(d)+list(wr), cost=2, cnt='vm'))
    def dma(s, voff, srd, soff, flags='', rd=(), wr=()):
        return s.add(I(f"buffer_load_dwordx4 {txt(voff)}, {txt(srd)}, {txt(soff)} offen{flags} lds", 'G', regs(voff)+regs(srd)+regs(soff)+['m0']+list(rd)+['exec'], list(wr), cost=2, cnt='vm', lds=8))
    def bstore(s, op, data, voff, srd, soff, off=0, flags='', rd=(), wr=()):
        assert 0<=off<4096
        o=f" offset:{off}" if off else ""
        n=data[2]
        x=s.add(I(f"{op} {txt(data)}, {txt(voff)}, {txt(srd)}, {txt(soff)} offen{o}{flags}", 'G', regs(voff)+regs(srd)+regs(soff)+regs(data)+list(rd)+['exec'], list(wr), cost=2, cnt='vm', wide=regs(data) if n>2 else ()))
        x.mb=n+1; x.slack=16; return x
    def s(s_, op, d, *src, scc_w=None, scc_r=False, rd=(), wr=()):
        r=[]
        for x in src: r+=regs(x)
        w=regs(d) if d is not None else []
        if scc_w is None:
            scc_w = op.split('_')[1] in ('add','sub','addc','subb','lshl','lshr','and','or','xor','cmp','min','max','andn2','bfe','ashr','cmpk','addk')
        if op.startswith('s_cselect') or op.startswith('s_addc') or op.startswith('s_subb'): scc_r=True
        if scc_w: w=w+['scc']
        if scc_r: r=r+['scc']
        ops=([txt(d)] if d is not None else [])+[txt(x) for x in src]
        return s_.add(I(f"{op} {', '.join(ops)}", 's', r+list(rd), w+list(wr)))
    def barrier(s, rd=(), wr=()):
        return s.add(I("s_barrier", 'B', list(rd)+['p:bar'], list(wr)+['p:bar']))
    def fuse(s, n):
        L=s.ins[-n:]; del s.ins[-n:]
        x=L[-1]; rd=[]; wr=[]
        for i in L:
            rd+=[r for r in i.rd if r not in wr and r not in rd]; wr+=[r for r in i.wr if r not in wr]
        assert 'm0' not in rd and 'scc' not in rd
        x.text="\n".join(i.text for i in L); x.rd=rd; x.wr=[r for r in wr if r not in ('m0','scc')]; x.cost=sum(i.cost for i in L)
        s.ins.append(x); return x
    def raw(s, text, rd=(), wr=(), kind='s', cnt=None):
        return s.add(I(text, kind, rd, wr, cnt=cnt))

def build_deps(ins):
    lastw={}; readers=defaultdict(list)
    for n,i in enumerate(ins):
        i.preds={}; i.succs=[]
    for n,i in enumerate(ins):
        for r in i.rd:
            if r in lastw: i.preds.setdefault(lastw[r], set()).add(('raw', r))
        for r in i.wr:
            if r=='scc': continue
            if r in lastw and lastw[r] is not i: i.preds.setdefault(lastw[r], set()).add(('waw', r))
            for p in readers[r]:
                if p is not i: i.preds.setdefault(p, set()).add(('war', r))
        for r in i.rd: readers[r].append(i)
        for r in i.wr:
            lastw[r]=i; readers[r]=[]
    for i in ins:
        for p in i.preds: p.succs.append(i)

def isreg(r): return not r.startswith('p:')

def hazard(p, c, deps):
    w=0
    for ty,r in deps:
        if not isreg(r): continue
        if p.kind=='M':
            if ty=='raw':
                if c.kind=='M':
                    if r in c.mc and c.mc==p.wr and not (r in c.rd[:len(c.rd)-len(c.mc)]) and c.text.split()[0]==p.text.split()[0]: w=max(w,0)
                    elif r in c.mc: w=max(w,6)
                    else: w=max(w,8)
                else: w=max(w,8)
            elif ty=='waw':
                if c.kind=='M':
                    w=max(w, 0 if c.wr==p.wr else 6)
                else: w=max(w,8)
            elif ty=='war':
                if r in p.mc and c.kind!='M': w=max(w,3)
        elif p.kind=='V':
            if ty=='raw':
                if c.kind=='M': w=max(w,2 if r!='exec' else 4)
                elif c.kind=='V':
                    if r[0]=='s' or r=='vcc': w=max(w,2)
                    if c.perm or 'dpp' in c.text: w=max(w,2)
                    if p.trans and not c.trans: w=max(w,1)
                    if 'readfirstlane' in c.text or 'readlane' in c.text: w=max(w,1)
                elif c.kind=='G':
                    if r[0]=='s': w=max(w,5)
                    if p.trans: w=max(w,1)
                elif c.kind in 'RW':
                    if p.trans: w=max(w,1)
                elif c.kind=='s':
                    w=max(w,1)
        elif p.kind=='s':
            if ty=='raw' and r=='m0': w=max(w,1)
        elif p.kind=='G':
            if ty=='war' and r in p.wide: w=max(w,2)
    return w

def needs_wait(p, deps):
    if p.cnt is None: return False
    for ty,r in deps:
        if ty in ('raw','waw') and not r.startswith('p:o:') and r[0]!='s': return True
    return False

LAT_LDS=16; LAT_VM=400; MARGIN=4; TASLACK=16; MEMPEN=3
class Model:
    def __init__(s):
        s.t=0; s.lastM=-99; s.lastV=-99; s.ldsfree=0; s.wfree=0; s.tafree=0; s.mblock=0; s.vmarr=0; s.lmt='M'; s.lastD=-999; s.nmem=0; s.memend=0
    def earliest(s, i):
        t=s.t
        dd=1 if s.lmt=='K' else 2
        if i.kind=='M': t=max(t, s.lastM+(5 if (i.mt=='K')!=(s.lmt=='K') else 4), s.mblock)
        elif i.kind=='V': t=max(t, s.lastM+(7 if i.mt=='P' else 3 if s.lmt=='Z' else dd))
        elif i.kind in 'RW': t=max(t, s.lastM+dd, s.lastV+2, s.wfree, s.ldsfree-12)
        elif i.kind=='G': t=max(t, s.lastM+dd, s.lastV+2, s.tafree-i.slack, s.lastD+i.gap)
        if i.kind in 'RWG' and s.nmem>=2: t=max(t,s.memend+MEMPEN)
        return t
    def issue(s, i, t):
        i.t=t
        if i.kind in 'RWG': s.nmem+=1; s.memend=t+i.cost
        elif i.kind in 'MV': s.nmem=0
        if i.kind=='M': s.lastM=t; i.arr=t+9; s.lmt=i.mt
        s.t=t+i.cost
        if i.kind=='V': s.lastV=s.t; i.arr=s.t
        if i.kind in 'sBX': i.arr=s.t
        if i.kind in 'RW':
            st=max(t, s.ldsfree); s.ldsfree=st+i.lds; i.arr=s.ldsfree+LAT_LDS
            if i.kind=='W': s.wfree=t+i.lds
        if i.kind=='G':
            s.tafree=max(t,s.tafree)+i.ta
            i.arr=max(s.tafree+(LAT_VM if i.vlat is None else i.vlat), s.vmarr); s.vmarr=i.arr
            if i.mb: s.mblock=t+i.mb
            if i.gap: s.lastD=t
        if i.kind=='B': s.t+=3

def schedule(ins, window=2000, mempref=60, oldthr=40, edf=1.0, rslack=8, vw=2, swthr=16, noover=0, chb=30, pkn=4, pkthr=0):
    assert not any('scc' in i.rd for i in ins)
    build_deps(ins)
    if edf:
        ms=sorted([i for i in ins if i.kind=='M'], key=lambda i:i.prio)
        for k,i in enumerate(ms): i.prio=k*4*edf
        last=len(ms)*4*edf
        for i in reversed(ins):
            if i.kind=='M': continue
            dl=last+50
            for sx in i.succs:
                d=sx.preds[i]
                if needs_wait(i,d): lat=(i.lds+LAT_LDS+MARGIN+rslack) if i.cnt=='lgkm' else ((LAT_VM if i.vlat is None else i.vlat)+i.ta)
                else: lat=max(hazard(i,sx,d)+1, vw*i.cost if i.kind!='s' else 4)
                if i.kind=='G' and sx.kind=='G': lat=max(lat,i.ta,sx.gap)
                dl=min(dl,sx.prio-lat)
            if i.tag!='top': i.prio=dl
    for i in ins:
        i.npred=len(i.preds); i.idx=None
    m_urg=lambda cand:min(c[0].prio for c in cand if c[0].kind=='M')
    hz={}
    def prep(i):
        hz[id(i)]=[(p,hazard(p,i,d),needs_wait(p,d)) for p,d in i.preds.items()]
    ready=[i for i in ins if i.npred==0]
    for i in ready: prep(i)
    out=[]; m=Model(); n=0; lastm=None
    covered={'lgkm':-1,'vm':-1}
    pend={'lgkm':[], 'vm':[]}
    while ready:
        cand=[]
        pm=min(i.prio for i in ready)
        nl=sum(1 for x in pend['lgkm'] if x.idx>covered['lgkm'])
        for i in ready:
            if i.prio>pm+window: continue
            e=m.earliest(i); wait=False
            if i.early is not None: e=max(e,i.early)
            for p,h,w in hz[id(i)]:
                if h and p.t+h+1>e: e=p.t+h+1
                if w and p.idx>covered[p.cnt]:
                    wait=True
                    if p.arr+MARGIN>e: e=p.arr+MARGIN
            if i.cnt=='lgkm' and nl>=13: e=max(e, m.t+3)
            cand.append((i,e,wait))
        now=[c for c in cand if c[1]<=m.t]
        inshadow = (m.t==m.lastM+1 and m.lmt!='K')
        pick=None
        if inshadow:
            want=[c for c in cand if c[2] and c[1]<=m.t+3]
            sc=[c for c in now if c[0].kind in 'sB' and not c[2]]
            if sc and not (want and min(c[0].prio for c in want)<min(c[0].prio for c in sc)+200): pick=min(sc,key=lambda c:c[0].prio)
            else:
                for c_ in pend:
                    for x in pend[c_]:
                        if x.arr<=m.t and x.idx>covered[c_]: covered[c_]=x.idx
                    pend[c_]=[x for x in pend[c_] if x.idx>covered[c_]]
                m.t+=1
                continue
        else:
            ms=[c for c in now if c[0].kind=='M']
            pk=[c for c in cand if c[0].mt=='P' and c[1]<=max(m.t,m.lastM+7)]
            if ms and len(pk)>=pkn and min(c[0].prio for c in pk)<min(c[0].prio for c in ms)-pkthr or (ms and any(c[0].mt=='P' for c in now)):
                ms=[]; now=[c for c in now if c[0].kind!='M']; cand=[c for c in cand if c[0].kind!='M']
                if any(c[0].mt=='P' for c in now): now=[c for c in now if c[0].mt=='P']
            if ms:
                pick=min(ms,key=lambda c:(c[0].prio+(30 if c[2] else 0)-(chb if (lastm is not None and c[0].mc==lastm.wr and c[0].mt==lastm.mt) else 0)))
                if any(c[0].kind=='M' and c[1]==m.t+1 and c[0].prio<pick[0].prio-swthr for c in cand):
                    pick=None; now=[c for c in now if c[0].kind!='M' and c[0].cost==1]
            if pick is None:
                if noover:
                    em=[c[1] for c in cand if c[0].kind=='M' and c[1]<=m.t+2]
                    first=m.lastM+(1 if m.lmt=='K' else 2)
                    if em and m.t>first:
                        room=min(em)-m.t
                        eff=lambda c:c[0].cost+(1 if c[2] else 0)+max(0,c[0].mb-c[0].cost)+(3 if c[0].kind=='B' else 0)
                        now=[c for c in now if eff(c)<=room or c[0].prio<m_urg(cand)-noover]
                nons=[c for c in now if c[0].kind not in 'sB']
                key=lambda c:c[0].prio+(30 if c[2] else 0)
                mem=[c for c in nons if c[0].kind in 'RWG']
                if mem and (not [c for c in nons if c[0].kind=='V'] or min(map(key,mem)) < min(map(key,nons))+mempref):
                    pick=min(mem,key=key)
                elif nons:
                    pick=min(nons,key=key)
                    if pick[0].cost>1 and m.t+1==m.lastM+4 and any(c[0].kind=='M' and c[1]<=m.t+1 for c in cand):
                        one=[c for c in nons if c[0].cost==1 and not c[2]]
                        if one: pick=min(one,key=key)
                    old=[c for c in cand if c[0].kind in 'RWGsB' and c[1]<=m.t+2 and c[0].prio<pick[0].prio-oldthr]
                    if old and not any(c[0].kind=='M' and c[1]<=m.t+3 for c in cand): pick=min(old,key=lambda c:c[0].prio)
                elif now: pick=min(now,key=lambda c:c[0].prio)
                else:
                    for c_ in pend:
                        for x in pend[c_]:
                            if x.arr<=m.t and x.idx>covered[c_]: covered[c_]=x.idx
                        pend[c_]=[x for x in pend[c_] if x.idx>covered[c_]]
                    m.t+=1
                    continue
        i,e,wait=pick
        if wait:
            for p,h,w in hz[id(i)]:
                if w and p.idx>covered[p.cnt]: covered[p.cnt]=p.idx
            m.t+=1
        m.t=max(m.t,e)
        m.issue(i,m.t); i.idx=n; n+=1; out.append(i)
        if i.kind=='M': lastm=i
        if i.cnt: pend[i.cnt].append(i)
        ready.remove(i)
        for sx in i.succs:
            sx.npred-=1
            if sx.npred==0: ready.append(sx); prep(sx)
    assert len(out)==len(ins), (len(out), len(ins))
    return out

def check_order(ref, order):
    build_deps(ref)
    pos={id(i):n for n,i in enumerate(order)}
    assert len(pos)==len(ref)
    bad=0
    for i in ref:
        for p in i.preds:
            if pos[id(p)]>pos[id(i)]:
                bad+=1
                if bad<5: print("ORDER VIOLATION", p.uid, p.win, p.text, '->', i.uid, i.win, i.text, i.preds[p])
    return bad==0

MAXCNT={'lgkm':15,'vm':63}
def finalize(order, lookback=40):
    out=[]; m=Model()
    seq={'lgkm':0,'vm':0}; myseq={}; ops={'lgkm':[], 'vm':[]}
    covered={'lgkm':-1,'vm':-1}
    slots=[]
    def mkwait(t):
        w=I('','s'); w.preds={}; w.tag='wait'; w.early={}; w.t=t; w.idx=dict(seq); return w
    prev=None; tseg=0
    for k,i in enumerate(order):
        if i.kind=='X':
            i.t=m.t; out.append(i); slots=[]; prev=i; tseg=m.t; continue
        e=m.earliest(i)
        if e>m.t and i.kind not in 'sB':
            w=mkwait(e-1); out.append(w); slots.append(w)
        for c in ('lgkm','vm'):
            need=-1
            for p,d in i.preds.items():
                if p.cnt==c and needs_wait(p,d) and myseq[id(p)]>need: need=myseq[id(p)]
            if need>covered[c]:
                arr=max(x.arr for x in ops[c][covered[c]+1:need+1])
                place=None
                if slots and slots[-1].idx[c]>need and (slots[-1].t>=arr or out[-1] is slots[-1]) and m.t-slots[-1].t<lookback: place=slots[-1]
                if place is None:
                    place=mkwait(m.t); out.append(place); slots.append(place); m.t+=1
                if out[-1] is place and arr>place.t:
                    place.t=arr; m.t=max(m.t,arr+1)
                place.early[c]=max(place.early.get(c,-1),need)
                covered[c]=need
        e=m.earliest(i)
        for p,d in i.preds.items():
            h=hazard(p,i,d)
            if h and p.t+h+1>e: e=p.t+h+1
        if i.early: e=max(e,i.early+tseg)
        m.issue(i,e); out.append(i)
        if i.cnt:
            myseq[id(i)]=seq[i.cnt]; seq[i.cnt]+=1; ops[i.cnt].append(i)
        prev=i
    res=[]
    def short(p,i,h):
        t=1; lastM=0 if p.kind=='M' else -99; tv=0; dd=1 if p.mt=='K' else 2
        for x in res[p.lb+1:p.lb+2+h+4]:
            if x.kind=='X': continue
            if x.kind=='M': t=max(t,lastM+4,tv); lastM=t; dd=1 if x.mt=='K' else 2
            elif x.kind in 'VRWG': t=max(t,lastM+dd,tv)
            if x.kind in 'VW': tv=t+x.cost
            t+= x.cost if x.tag=='nop' else 1
            if t>h: return 0
        ti=t
        if i.kind=='M': ti=max(t,lastM+4,tv)
        elif i.kind in 'VRWG': ti=max(t,lastM+dd,tv)
        return 0 if ti>h else h+1-t
    for i in out:
        if i.tag=='wait':
            if not i.early: continue
            parts=[]
            for c,name in (('vm','vmcnt'),('lgkm','lgkmcnt')):
                if c in i.early:
                    nn=i.idx[c]-1-i.early[c]; assert nn>=0
                    parts.append(f"{name}({min(nn,MAXCNT[c]-1)})")
            i.text="s_waitcnt "+" ".join(parts)
        if i.kind=='X': res.append(i); continue
        hzn=0
        for p,d in i.preds.items():
            h=hazard(p,i,d)
            if h: hzn=max(hzn,short(p,i,h))
        if hzn:
            w=I(f"s_nop {hzn-1}",'s',cost=hzn); w.preds={}; w.tag='nop'; w.t=i.t-hzn
            res.append(w)
        i.lb=len(res); res.append(i)
    return res, m.t
```

```python
import sys, os, struct, re
from asmlib import *
import asmlib

NAME="standalone__window_attn_davit__vision"
ROW=196224; PIX=384; NB=100270464; NWIN=21
OOB=0x70000000
XROW=257*16; XPIX=25*16
L_X=0
L_H=[37120, 37120+18432+2048]
L_ST=L_H[0]+18432
L_O=L_H[1]+18432
L_LS=L_O+18432
LS_SLOT=1424
L_SG=L_LS+21*LS_SLOT
SGP=392; OSH=0x40000
assert L_SG+48*SGP<=L_LS+49152
L_CA=L_LS+49152
L_FLAG=L_CA+19008
L_END=L_FLAG+64
LDS_BYTES=163840
assert L_END<=LDS_BYTES
FB=L_H[0]
X0=[0,36]
Q0,K0,Q1,Q2,K1,K2,KL=72,78,84,90,96,102,108
QP=[Q0,Q1,Q2]; KP=[K0,K1,K2,KL]
VP=114
ACC=138
PP=174
HF=182
ONES=190
a=194
CVA=a; a+=9
SGW=a; a+=1
SGR=a; a+=1
LVA=a; a+=1
MASK=a; a+=1
assert MASK%2==0
MASK2=a; a+=1
DMF=a; a+=1
SWA=a; a+=1
FRA=a; a+=1
FW1=a; a+=1
FW2=a; a+=1
IDX=a; a+=1
PWA=a; a+=1
LQA=a; a+=1
PFA=a; a+=1
CAA=a; a+=1
CHK=a; a+=1
BRA=a; a+=1
XT=a; a+=4
assert a==224, a
DMV=PFA
PL=Q1
def Wk(dt,k): return A(0+4*(dt*6+k),4)
def Wv(dt,k): return A(72+4*(dt*6+k),4)
def Wo(dt,k): return A(144+4*(dt*6+k),4)
def Wq(dt,k):
    n=dt*6+k
    return A(216+4*n,4) if n<10 else V(224+4*(n-10),4)
SRX=S(4,4); SRO=S(8,4); SRW=S(12,4); SRWO=S(16,4); SRDW=S(20,4); SRWS=S(24,4)
sW=S(32); sW0=S(33); sEND=S(34); sWID=S(35); sB=[S(36),S(37)]; sO=[S(38),S(39)]
sOFF=S(40); sT0=S(41); sT1=S(42); sT2=S(43); sMSK=S(44); sM0=S(45); sCNT=S(46); sMODE=S(47)
sINV=S(48); sEPS=S(49); sWSO=S(50); sT3=S(51); sPF=S(52); sWG=S(53); sMK0=S(72); sINV2=S(73); sRA=S(3); sN=S(50); sTOP=S(52); sO2=[S(28),S(29)]; sPX=60; sL=S(72)

LEFT=(4,2)
EVEN_L=[0,1,2,3,12,13,14,15]; ODD_L=[4,5,6,7,8,9,10,11]
def token_map():
    cls={}
    for c in range(7):
        for r in range(7):
            if (r,c)!=LEFT: cls.setdefault((r+9*c)%16,[]).append((r,c))
    tok=[[None]*16 for _ in range(3)]
    for res,lst in cls.items():
        assert len(lst)==3
        lst=sorted(lst)
        lane=(EVEN_L if res%2==0 else ODD_L)[res//2]
        for t in range(3): tok[t][lane]=lst[t]
    return tok
TOK=token_map()
CORN=[(0,0),(0,2),(2,0),(2,2)]; EDGE=[(0,1),(1,0),(1,2),(2,1)]

class Gen(Prog):
    def __init__(s, cfg):
        super().__init__(); s.cfg=cfg; s.unit=None; s.cnt=0; s.hook=None; s.nwin=cfg.get('nwin',21)
        asmlib.LAT_LDS=cfg.get('lat',16)
    def begin(s, name, body, t0, t1):
        s.flush(); s.unit=(name, body, t0, t1, len(s.ins))
    def flush(s):
        if s.unit is None: return
        name,body,t0,t1,st=s.unit
        n=len(s.ins)-st
        for k,i in enumerate(s.ins[st:]):
            i.uid=(name,k); i.win=body
            i.prio=body*s.cfg['period']+t0+(t1-t0)*k/max(1,n-1)
            if i.kind=='R': i.prio-=s.cfg.get('rlead',40)
        s.unit=None

    def u_wc(g, i, body, t0, t1, fused=False, pf=True):
        g.begin('WC',body,t0,t1)
        g.s('s_mul_hi_u32', sT0, sWID, 58835169)
        g.s('s_mul_i32', sT1, sT0, 73)
        g.s('s_sub_u32', sT1, sWID, sT1)
        g.s('s_mul_i32', sT2, sT0, 7*ROW)
        g.s('s_mul_i32', sT3, sT1, 7*PIX)
        g.s('s_add_u32', sN, sT2, sT3)
        g.s('s_add_u32', sWID, sWID, 32)
        g.s('s_min_u32', sT0, sT0, 1); g.s('s_sub_u32', sT0, 1, sT0); g.s('s_lshl_b32', sT0, sT0, 30)
        g.s('s_add_u32', sTOP, sN, sT0)
        g.s('s_min_u32', sT2, sT1, 1); g.s('s_lshl_b32', sT2, sT2, 27); g.s('s_sub_u32', sT2, 0x1fffffff, sT2)
        g.s('s_add_u32', sT3, sT1, 56); g.s('s_and_b32', sT3, sT3, 128); g.s('s_lshl_b32', sT3, sT3, 22)
        g.s('s_or_b32', sMSK, sT2, sT3)
        if fused: g.fuse(18)
        if pf and g.cfg['pf']:
            g.s('s_mov_b32', 'm0', L_X+225*16)
            g.s('s_max_u32', sOFF, sN, ROW+PIX)
            x=g.dma(V(PFA), SRX, sOFF, flags=g.cfg['pfflags'], rd=['p:o:DM'], wr=['p:o:DM'])
            x.text=x.text.replace('dwordx4','dword'); x.ta=64
            if fused: g.fuse(3)
        g.flush()
    def u_dma(g, i, body, t0, t1, fused=False):
        p=i&1
        g.begin('DMA',body,t0,t1)
        g.s('s_mov_b32', sB[p], sN)
        g.v('v_and_b32', V(DMV), sMSK, V(DMF))
        for R in range(9):
            g.s('s_add_u32', 'm0', sM0, R*XROW)
            if R>0: g.s('s_add_u32', sOFF, sM0 if g.cfg.get('hotx') else sB[p], R*ROW+(8*ROW if g.cfg.get('hotx') else 0))
            elif fused: g.raw('s_nop 0')
            x=g.dma(V(DMV), SRX, sOFF if R else sTOP, flags=g.cfg['ldflags'] if i<19 else g.cfg.get('ldlast',g.cfg['ldflags']), rd=['p:Xfree','p:o:DM'], wr=[f'p:Xw{R}','p:o:DM'])
            x.gap=(0 if fused else g.cfg['dmata']); x.vlat=g.cfg['dmalat']; x.slack=64 if fused else 16
            if fused: g.fuse(3)
        g.flush()

    def conv_tile(g, c, t, kind, abuf, bbuf, x0, load):
        d=V(x0+12*t+4*c,4)
        if kind==0:
            load(V(bbuf,4), 2, t, c*32)
            g.mfma(d, V(abuf,4), V(bbuf,4), 0)
        else:
            load(V(bbuf,4), kind-1, t, c*32)
            load(V(bbuf+4,4), kind-1, t, c*32+16)
            g.smfmac(d, V(abuf,4), V(bbuf,8), V(IDX))

    def u_conv(g, i, body, t0, t1, areg=None):
        p=i&1
        g.begin('CONV',body,t0,t1)
        def load(d, pat, t, off): g.dsr('ds_read_b128', d, V(CVA+3*pat+t), off, rd=['p:Xok'])
        n=0; m=0
        for c in range(3):
            for kind in range(3):
                ab=PP+4*(m&1); m+=1
                if areg is None: g.dsr('ds_read_b128', V(ab,4), V(CAA), (c*3+kind)*528, rd=['p:o:CA'])
                else: ab=areg+4*(c*3+kind)
                for t in range(3):
                    bb=Q1+8*(n%3); n+=1
                    g.conv_tile(c,t,kind,ab,bb,X0[p],load)
        g.flush()

    def stat_acc(g, x0, c, t, s1, s2):
        b=x0+12*t+4*c
        if c==0:
            g.v('v_add_f32', V(s1), V(b), V(b+1))
            g.v('v_mul_f32', V(s2), V(b), V(b))
            g.v('v_add_f32', V(s1), V(s1), V(b+2))
            g.v('v_fmac_f32', V(s2), V(b+1), V(b+1), rmw=True)
            g.v('v_add_f32', V(s1), V(s1), V(b+3))
            g.v('v_fmac_f32', V(s2), V(b+2), V(b+2), rmw=True)
            g.v('v_fmac_f32', V(s2), V(b+3), V(b+3), rmw=True)
        else:
            for r in range(4):
                g.v('v_add_f32', V(s1), V(s1), V(b+r))
                g.v('v_fmac_f32', V(s2), V(b+r), V(b+r), rmw=True)

    def u_stat(g, i, body, times, ntile=3, x0=None):
        p=i&1; x0=X0[p] if x0 is None else x0
        sr=[VP+8*t+4 for t in range(3)]
        tmp=[VP+8*t+6 for t in range(3)]
        for c in range(3):
            g.begin(f'STAT{c}',body,*times[c])
            for t in range(ntile): g.stat_acc(x0,c,t,sr[t],sr[t]+1)
        g.begin('STATR',body,*times[3])
        for t in range(ntile):
            g.swap(16, V(sr[t]), V(sr[t]+1))
            g.v('v_add_f32', V(sr[t]), V(sr[t]), V(sr[t]+1))
        if ntile==1: g.v('v_mov_b32', V(sr[1]), V(sr[0]))
        g.swap(32, V(sr[0]), V(sr[1]))
        g.v('v_add_f32', V(sr[0]), V(sr[0]), V(sr[1]))
        g.dsw('ds_write_b32', V(SWA), V(sr[0],1), 0, wr=['p:STw0'])
        if ntile==3:
            g.v('v_mov_b32', V(sr[2]+1), V(sr[2]))
            g.swap(32, V(sr[2]), V(sr[2]+1))
            g.v('v_add_f32', V(sr[2]), V(sr[2]), V(sr[2]+1))
            g.dsw('ds_write_b32', V(SWA), V(sr[2],1), 512, wr=['p:STw1'])
        g.flush()

    def u_bs(g, body, t):
        g.begin('BS',body,t,t)
        g.barrier(rd=['p:STw0','p:STw1','p:TKw']+[f'p:Or{t}_{k}' for t in range(3) for k in range(6)]+[f'p:SGw{t}{c}' for t in (1,2) for c in range(3)], wr=['p:STok','p:Xfree','p:Ofree']+([] if g.cfg.get('bg') else ['p:SGok1','p:SGok2']))
        g.flush()

    def u_norm(g, i, body, times, ntile=3, hbuf=None, x0=None):
        p=i&1; x0=X0[p] if x0 is None else x0
        if hbuf is None: hbuf=L_H[p]
        sr=[VP+8*t+4 for t in range(3)]
        g.begin('STATF',body,*times[0])
        SF=K2
        g.dsr('ds_read_b128', V(SF,4), V(FRA), L_ST-FB, rd=['p:STok'])
        g.dsr('ds_read_b128', V(SF+4,4), V(FRA), L_ST-FB+1024, rd=['p:STok'])
        g.v('v_add_f32', V(SF), V(SF), V(SF+1)); g.v('v_add_f32', V(SF+4), V(SF+4), V(SF+5))
        g.v('v_add_f32', V(SF+2), V(SF+2), V(SF+3)); g.v('v_add_f32', V(SF+6), V(SF+6), V(SF+7))
        g.v('v_add_f32', V(SF), V(SF), V(SF+2)); g.v('v_add_f32', V(SF+4), V(SF+4), V(SF+6))
        g.v('v_mul_f32', V(SF+1), sINV, V(SF))
        g.v('v_mul_f32', V(SF+2), sINV2, V(SF))
        g.v('v_mul_f32', V(SF+4), sINV2, V(SF+4))
        g.v('v_fma_f32', V(SF+4), ('neg',V(SF+1)), V(SF+2), V(SF+4))
        g.v('v_max_f32', V(SF+4), 0, V(SF+4))
        g.v('v_add_f32', V(SF+4), sEPS, V(SF+4))
        g.v('v_rsq_f32', V(SF), V(SF+4))
        g.v('v_mul_f32_e64', V(SF+1), ('neg',V(SF+1)), V(SF))
        g.dsw('ds_write_b64', V(FW1), V(SF,2), hbuf-FB, wr=['p:o:BC'])
        for t in range(ntile):
            g.dsr('ds_read_b64', V(sr[t],2), V(BRA), hbuf-FB+256*t, rd=['p:o:BC'])
        for t in range(ntile):
            g.begin(f'NORM{t}',body,*times[1+t])
            hp=[PP,Q2,Q2][t]; ft=XT
            n=0
            for c in range(3):
                for h in range(2):
                    b=x0+12*t+4*c+2*h; f=ft+2*(n%2); n+=1
                    g.v('v_fma_f32', V(f), V(b), V(sr[t]), V(sr[t]+1))
                    g.v('v_fma_f32', V(f+1), V(b+1), V(sr[t]), V(sr[t]+1))
                    g.v('v_cvt_pk_bf16_f32', V(hp+2*c+h), V(f), V(f+1))
                if c==1: g.dsw('ds_write_b128', V(FW1), V(hp,4), hbuf-FB+6144*t, wr=[f'p:Hw{t}a']+(['p:o:BC'] if t==0 else []))
            g.dsw('ds_write_b64', V(FW2), V(hp+4,2), hbuf-FB+6144*t, wr=[f'p:Hw{t}b'])
        g.flush()

    def u_qkv(g, i, body, t0, t1, mid=None):
        p=i&1
        bd=[0,3/7,6/7,1]
        bd=[t0+(t1-t0)*x for x in bd]
        for t in range(3):
            if t==2 and g.hook: g.hook(g,body,('lq',bd[2]))
            g.begin(f'QKV{t}',body,bd[t],bd[t+1] if t!=1 else bd[1]+(bd[2]-bd[1])/3)
            hbs=[[HF,HF+4,KL+2,XT,HF,HF+4],[KL+2,XT,HF,HF+4,KL+2,K2+4],[HF,HF+4,PP,PP+4,HF,HF+4]][t]
            for kp in range(0,6,2):
                for k in (kp,kp+1): g.dsr('ds_read_b128', V(hbs[k],4), V(FRA), L_H[p]-FB+6144*t+1024*k, rd=['p:Hok'])
                for n in range(9):
                    if t==2 and n>=3: continue
                    for k in (kp,kp+1):
                        d=V(ACC+4*n,4); c=d if k else 0; hb=V(hbs[k],4)
                        if n<3: g.mfma(d, Wk(n,k), hb, c)
                        elif n<6: g.mfma(d, Wq(n-3,k), hb, c)
                        else: g.mfma(d, hb, Wv(n-6,k), c)
                if t==1 and kp==0 and mid: mid(); g.begin('QKV1b',body,bd[1]+(bd[2]-bd[1])/3,bd[2])
            e=bd[t+1]
            g.begin(f'QKVC{t}',body,e-60,e-40)
            for n in range(9):
                if t==2 and n>=3: continue
                b=ACC+4*n
                dst = KP[t]+2*n if n<3 else (QP[t]+2*(n-3) if n<6 else VP+8*(n-6)+2*t)
                g.v('v_cvt_pk_bf16_f32', V(dst), V(b), V(b+1))
                g.v('v_cvt_pk_bf16_f32', V(dst+1), V(b+2), V(b+3))
        g.flush()

    def u_q2(g, i, body, t0, t1):
        p=i&1
        g.begin('Q2',body,t0,t1)
        acc=[Q2,ACC+32,XT]; hbs=[HF,HF+4,PP,PP+4,HF,HF+4]
        for kp in (4,2,0):
            if kp==0:
                for k in (kp,kp+1): g.dsr('ds_read_b128', V(hbs[k],4), V(FRA), L_H[p]-FB+6144*2+1024*k, rd=['p:Hok'])
            for n in range(3):
                for k in (kp,kp+1):
                    d=V(VP+8*n+4,4); g.mfma(d, V(hbs[k],4), Wv(n,k), d if k!=4 else 0)
            for n in range(3):
                for k in (kp,kp+1):
                    d=V(acc[n],4); g.mfma(d, Wq(n,k), V(hbs[k],4), d if k!=4 else 0)
        g.v('v_mov_b32', V(PP+7), 0)
        g.begin('Q2C',body,t1-30,t1-10)
        for n in range(3):
            b=VP+8*n+4
            g.v('v_cvt_pk_bf16_f32', V(b), V(b), V(b+1))
            g.v('v_cvt_pk_bf16_f32', V(b+1), V(b+2), V(b+3))
            g.dsr('ds_read_u16', V(b+2), V(LVA), 32*n, rd=['p:o:LS'])
            g.v('v_mov_b32', V(b+3), 0)
            if n==2: g.v('v_add_u32', V(LVA), LS_SLOT, V(LVA))
        for n in range(3):
            b=acc[n]
            g.v('v_cvt_pk_bf16_f32', V(Q2+2*n), V(b), V(b+1))
            g.v('v_cvt_pk_bf16_f32', V(Q2+2*n+1), V(b+2), V(b+3))
        g.flush()

    def dppmov(g, d, s_, row):
        g.v('v_mov_b32_dpp', V(d), V(s_), rmw=True, extra=f' quad_perm:[0,1,2,3] row_mask:{hex(1<<row)} bank_mask:0xf')
    def u_sl(g, body, t0, t1, t2, t3):
        g.begin('SL',body,t0,t1)
        reg=ACC+16
        kf=g.cfg['kfirst'][3]
        for ps in range(2):
            for a_ in range(3):
                d=V(reg+4*a_,4); c=d if ps else 0
                if ps==kf: g.mfma(d, V(Q0,4), V(KP[a_],4), c)
                else: g.mfma(d, V(Q0+4,2), V(KP[a_]+4,2), c, k=16)
        g.begin('EL',body,t2,t3)
        g.dsr('ds_read_b32', V(reg+12), V(LQA), 512+24, rd=['p:o:LS'])
        g.dppmov(reg,reg+4,1); g.dppmov(reg,reg+8,2)
        g.v('v_add_f32_dpp', V(reg), V(reg+12), V(MASK2), rmw=True, extra=' quad_perm:[0,1,2,3] row_mask:0x8 bank_mask:0xf')
        if g.cfg['safe']:
            m=reg+1; m2=reg+2
            g.v('v_mov_b32', V(m), V(reg))
            for r in (8,4,2,1): g.v('v_max_f32_dpp', V(m), V(m), V(m), extra=f' row_ror:{r} row_mask:0xf bank_mask:0xf')
            for n in (16,32):
                g.v('v_mov_b32', V(m2), V(m)); g.swap(n, V(m), V(m2)); g.v('v_max_f32', V(m), V(m), V(m2))
            g.v('v_sub_f32', V(reg), V(reg), V(m))
        g.v('v_exp_f32', V(reg+12), V(reg))
        g.v('v_cvt_pk_bf16_f32', V(reg), V(reg+12), 0)
        g.dsw('ds_write_b16', V(PWA), V(reg,1), 0, wr=['p:o:PL'])
        l=V(reg+12)
        for r in (8,4,2,1): g.v('v_add_f32_dpp', l, l, l, extra=f' row_ror:{r} row_mask:0xf bank_mask:0xf')
        g.v('v_add_f32_dpp', l, l, l, extra=' row_bcast:15 row_mask:0xa bank_mask:0xf')
        g.v('v_add_f32_dpp', l, l, l, extra=' row_bcast:31 row_mask:0xc bank_mask:0xf')
        g.v('v_readlane_b32', sL, l, 63)
        g.v('v_rcp_f32', V(reg+13), sL)
        if not g.cfg['safe']: g.v('v_max3_u32', V(CHK), V(CHK), sL, V(reg+13))
        g.v('v_mul_f32', V(reg+14), sRA, V(reg+13))
        g.dsr('ds_read_b128', V(PL,4), V(LQA), 0, rd=['p:o:PL'])
        g.dsr('ds_read_b128', V(PL+4,4), V(LQA), 16, rd=['p:o:PL'])
        g.v('v_add_u32', V(LQA), LS_SLOT, V(LQA))
        g.flush()
    def u_pvl(g, body, t0, t1, t2, t3):
        g.begin('PVL',body,t0,t1)
        reg=ACC+16
        for dt in range(3):
            for ks in range(2):
                d=V(reg+4*dt,4); g.mfma(d, V(PL+4*ks,4), V(VP+8*dt+4*ks,4), d if ks else 0)
        g.begin('NL',body,t2,t3)
        g.dppmov(reg,reg+4,1); g.dppmov(reg,reg+8,2)
        g.v('v_mul_f32', V(reg), V(reg), V(reg+14))
        g.v('v_cvt_pk_bf16_f32', V(reg), V(reg), 0)
        g.dsw('ds_write_b16', V(PWA), V(reg,1), 0, wr=['p:o:PL']+(['p:LAST1'] if body==g.nwin-1 else []))
        g.v('v_add_u32', V(PWA), LS_SLOT, V(PWA))
        g.flush()

    def u_left(g, i, body, t0):
        g.begin('LEFT',body,t0,t0+10)
        g.dsr('ds_read_b128', V(KL,4), V(LQA), 512, rd=['p:o:LS'])
        g.dsr('ds_read_b64', V(KL+4,2), V(LQA), 512+16, rd=['p:o:LS'])
        g.flush()

    def u_s(g, body, t, t0, t1):
        g.begin(f'S{t}',body,t0,t1)
        reg=ACC+16*(t&1); q=QP[t] if t<3 else Q0
        kf=g.cfg['kfirst'][t]
        for ps in range(2):
            for a_ in (0,1,3,2):
                d=V(reg+4*a_,4); c=d if ps else (0 if a_<3 else V(MASK,4))
                if ps==kf: g.mfma(d, V(KP[a_],4), V(q,4), c)
                else: g.mfma(d, V(KP[a_]+4,2), V(q+4,2), c, k=16)
        if t==0:
            g.dsr('ds_read_b128', V(Q0,4), V(LQA), 0, rd=['p:o:LS'])
            g.dsr('ds_read_b64', V(Q0+4,2), V(LQA), 16, rd=['p:o:LS'])
        g.flush()
    def u_e(g, body, t, t0, t1):
        g.begin(f'E{t}',body,t0,t1)
        reg=ACC+16*(t&1)
        order=[0,1,2,3,4,5,6,7,12,8,9,10,11]
        if g.cfg['safe']:
            TM0=reg+13; TM1=reg+14
            g.v('v_max3_f32', V(TM0), V(reg), V(reg+1), V(reg+2))
            for r in range(3,13,2): g.v('v_max3_f32', V(TM0), V(TM0), V(reg+r), V(reg+r+1))
            for n in (16,32):
                g.v('v_mov_b32', V(TM1), V(TM0))
                g.swap(n, V(TM0), V(TM1))
                g.v('v_max_f32', V(TM0), V(TM0), V(TM1))
            for r in order: g.v('v_sub_f32', V(reg+r), V(reg+r), V(TM0))
        for r in order: g.v('v_exp_f32', V(reg+r), V(reg+r))
        for r in range(6): g.v('v_cvt_pk_bf16_f32', V(PP+r), V(reg+2*r), V(reg+2*r+1))
        g.v('v_cvt_pk_bf16_f32', V(PP+6), V(reg+12), 0)
        g.flush()
    def u_pv(g, body, t, t0, t1):
        g.begin(f'PV{t}',body,t0,t1)
        reg=ACC+16*(t&1)
        for ks in range(2):
            d=V(reg+12,4); g.mfma(d, V(ONES,4), V(PP+4*ks,4), d if ks else 0)
        for dt in range(3):
            for ks in range(2):
                d=V(reg+4*dt,4); g.mfma(d, V(VP+8*dt+4*ks,4), V(PP+4*ks,4), d if ks else 0)
        g.flush()
    def u_n(g, body, t, t0, t1):
        g.begin(f'N{t}',body,t0,t1)
        reg=ACC+16*(t&1)
        g.v('v_rcp_f32', V(reg+13), V(reg+12))
        if not g.cfg['safe']: g.v('v_max3_u32', V(CHK), V(CHK), V(reg+12), V(reg+13))
        g.v('v_mul_f32', V(reg+14), sRA, V(reg+13))
        for r in range(6):
            if g.cfg.get('pk',[0,0,0])[t]:
                x=g.v('v_pk_mul_f32', V(reg+2*r,2), V(reg+2*r,2), V(reg+14,2), extra=' op_sel_hi:[1,0]')
            else:
                g.v('v_mul_f32', V(reg+2*r), V(reg+2*r), V(reg+14))
                g.v('v_mul_f32', V(reg+2*r+1), V(reg+2*r+1), V(reg+14))
            g.v('v_cvt_pk_bf16_f32', V(reg+r), V(reg+2*r), V(reg+2*r+1))
            if r==3: g.dsw('ds_write_b128', V(FW1), V(reg,4), L_O-FB+6144*t, rd=['p:Ofree'], wr=[f'p:Ow{t}a'])
        g.dsw('ds_write_b64', V(FW2), V(reg+4,2), L_O-FB+6144*t, rd=['p:Ofree'], wr=[f'p:Ow{t}b'])
        g.flush()
    def u_d(g, i, body, t, t0, t1, te0, te1):
        p=i&1
        g.begin(f'D{t}',body,t0,t1)
        ring=[XT,KL+2,ACC+32,HF,HF+4]
        obs=[ring[(6*t+k)%5] for k in range(6)]
        for kp in range(0,6,2):
            for k in (kp,kp+1): g.dsr('ds_read_b128', V(obs[k],4), V(FRA), L_O-FB+6144*t+1024*k, rd=[f'p:Ook{t}'], wr=[f'p:Or{t}_{k}'])
            for c in range(3):
                for k in (kp,kp+1):
                    d=V(X0[p]+12*t+4*c,4); g.mfma(d, Wo(c,k), V(obs[k],4), d)
        g.begin(f'DE{t}',body,te0,te1)
        for c in range(3):
            b=X0[p]+12*t+4*c
            g.v('v_cvt_pk_bf16_f32', V(b), V(b), V(b+1))
            g.v('v_cvt_pk_bf16_f32', V(b+1), V(b+2), V(b+3))
            g.dsw('ds_write_b64', V(SGW), V(b,2), 16*SGP*t+32*c, rd=['p:SGfree'], wr=[f'p:SGw{t}{c}'])
        g.flush()
    def u_out(g, i, body, t, t0):
        p=i&1
        g.begin(f'OUT{t}',body,t0,t0+40)
        for jj in range(4):
            n=4*t+jj; b=VP+6+8*(n%3)
            g.dsr('ds_read_b64', V(b,2), V(SGR), 16*SGP*t+SGP*jj, rd=[f'p:SGok{t}'], wr=[f'p:SGr{n}'])
            g.s('s_add_u32', sO2[n&1], sO[p], S(sPX+n))
            x=g.bstore('buffer_store_dwordx2', V(b,2), V(SGR), SRO, sO2[n&1], 0, flags=g.cfg['stflags'], rd=[g.cfg.get('stch','p:o:DM')], wr=[g.cfg.get('stch','p:o:DM')]); x.ta=g.cfg['stta']; x.slack=2
        g.flush()

    def body(g, i):
        T=g.cfg['times']
        NWIN=g.nwin
        ok=lambda w: 0<=w<NWIN
        merge=g.cfg['mergebx']
        xw=[f'p:Xw{R}' for R in range(9)]
        if ok(i-1) or (merge and ok(i+1)):
            g.begin('BO2',i,T['bo2'],T['bo2'])
            g.barrier(rd=['p:Ow2a','p:Ow2b']+([] if g.cfg.get('bg') and i<NWIN else ['p:SGw00','p:SGw01','p:SGw02'])+(xw if merge else []), wr=['p:Ook2','p:SGok0']+(['p:Xok'] if merge else []))
        bg=g.cfg.get('bg')
        if ok(i-1):
            last=(i==NWIN)
            if not bg or last: g.u_out(i-1,i,0,T['bo2'])
            if bg and last:
                g.begin('BG1',i,T['bs'],T['bs'])
                g.barrier(rd=[f'p:SGw1{c}' for c in range(3)]+['p:LAST1','p:LAST2'], wr=['p:SGok1','p:LASTok'])
                g.u_out(i-1,i,1,T['bs'])
            g.u_d(i-1,i,2,*T['d2'])
            if bg and last:
                g.begin('BG',i,T['bs'],T['bs'])
                g.barrier(rd=[f'p:SGw2{c}' for c in range(3)], wr=['p:SGok2'])
                g.u_out(i-1,i,2,T['bs'])
            elif bg:
                g.begin('BG',i,T['bs'],T['bs'])
                g.barrier(rd=['p:TKw']+[f'p:SGw{t}{c}' for t in range(3) for c in range(3)], wr=['p:SGok0','p:SGok1','p:SGok2'])
                for t in range(3): g.u_out(i-1,i,t,T['bs'])
        if g.hook: g.hook(g,i,'d2')
        if ok(i):
            g.begin('SO',i,T['so'],T['so']); g.s('s_mov_b32', sO[i&1], OOB if g.cfg.get('nost') else sB[i&1]); g.flush()
        if ok(i+1):
            if not merge:
                g.begin('BX',i,T['bx'],T['bx']); g.barrier(rd=xw, wr=['p:Xok'])
            g.u_conv(i+1,i,*T['conv'])
            g.u_stat(i+1,i,T['stat'])
        if -1<=i<=NWIN-(1 if bg else 0): g.u_bs(i,T['bs'])
        if ok(i-1) and not bg: g.u_out(i-1,i,1,T['bs']); g.u_out(i-1,i,2,T['bs'])
        if g.hook: g.hook(g,i,'bs')
        if ok(i+2): g.u_wc(i+2,i,*T['dma']); g.u_dma(i+2,i,*T['dma'])
        def mid():
            if ok(i+1): g.u_norm(i+1,i,T['norm'])
            if g.hook: g.hook(g,i,'norm')
        if not ok(i): mid()
        hw=[f'p:Hw{t}{x}' for t in range(3) for x in 'ab']
        if ok(i):
            g.u_qkv(i,i,*T['qkv'],mid=mid)
            g.u_left(i,i,T['left'])
            g.u_s(i,0,*T['s0']); g.u_s(i,1,*T['s1'])
            g.u_q2(i,i,*T['q2'])
            if g.hook: g.hook(g,i,'q2')
            g.u_e(i,0,*T['e0']); g.u_pv(i,0,*T['pv0'])
            g.u_e(i,1,*T['e1']); g.u_pv(i,1,*T['pv1'])
            g.u_n(i,0,*T['n0']); g.u_s(i,2,*T['s2'])
            if g.cfg.get('bo0'):
                g.begin('BO0',i,T['bo01'],T['bo01'])
                g.barrier(rd=['p:Ow0a','p:Ow0b'], wr=['p:Ook0']); g.flush()
            g.u_n(i,1,*T['n1']); g.u_sl(i,*T['sl'])
        if -1<=i<NWIN:
            g.begin('BO01',i,T['bo01'],T['bo01'])
            g.barrier(rd=['p:Ow0a','p:Ow0b','p:Ow1a','p:Ow1b']+hw+[f'p:SGr{n}' for n in range(12)], wr=['p:Ook1','p:Hok','p:SGfree']+([] if g.cfg.get('bo0') else ['p:Ook0']))
            g.flush()
        if ok(i):
            g.u_d(i,i,0,*T['d0'])
            g.u_e(i,2,*T['e2']); g.u_pv(i,2,*T['pv2'])
            g.u_n(i,2,*T['n2'])
            g.u_pvl(i,*T['pvl'])
            g.u_d(i,i,1,*T['d1'])
        if g.hook: g.hook(g,i,'end')
        g.flush()

TIMES=dict(
  bo2=-30, d2=(0,70,75,100), so=0, bx=60,
  conv=(70,330), stat=[(160,210),(250,300),(330,380),(380,405)], bs=410, dma=(415,560),
  norm=[(415,470),(490,550),(550,610),(610,670)],
  qkv=(70,690), left=600,
  s0=(690,720), s1=(720,750), q2=(750,890), e0=(730,800), pv0=(890,920), e1=(800,900), pv1=(920,950),
  n0=(920,960), s2=(960,990), n1=(970,1010), sl=(1010,1040,1045,1055), bo01=1015,
  d0=(1040,1110,1140,1150), e2=(1020,1080), pv2=(1080,1100), pvl=(1120,1150,1190,1200), d1=(1150,1240,1245,1260),
  n2=(1110,1160))
def load_tuned(cfg, fn):
    import json
    c=json.load(open(fn)); T=dict(TIMES)
    for k,v in c['t'].items(): T[k]=tuple(v)+tuple(TIMES[k][2:])
    cfg['times']=T; cfg['sp']=c['sp']; cfg.update(c['opt'])
CFG=dict(period=1250, times=TIMES, safe=False, ldflags=' nt', stflags=' sc1', stta=13, rlead=40, sched=True, mergebx=True, kfirst=[0,1,0,1], dmata=40, dmalat=250, pf=0, pfflags=' nt')

def template(cfg):
    if cfg.get('tpl'): return [(tuple(u),o) for u,o in cfg['tpl']]
    g2=Gen(cfg); nb=6
    for i in range(1,nb): g2.body(i)
    o=schedule(g2.ins, **cfg.get('sp',{}))
    cut=cfg.get('cut',('QKV1b',2))
    pos={(i.uid,i.win):n for n,i in enumerate(o)}
    tm={(i.uid,i.win):i.t for i in o}
    if cfg.get('verbose'): print("cut times", [tm[(cut,b)] for b in range(1,nb)], file=sys.stderr)
    full=set(i.uid for i in g2.ins if i.win==3)
    for b in (3,4,2):
        a0,a1=pos[(cut,b)],pos[(cut,b+1)]
        tpl=[(i.uid,i.win-b) for i in o[a0:a1]]
        uids=[u for u,_ in tpl]
        if len(set(uids))==len(uids) and set(uids)==full: return tpl
        print("template not periodic at",b,len(uids),len(full), file=sys.stderr)
    raise SystemExit("no valid template")

def segments(ins, tpl):
    by={(i.uid,i.win):i for i in ins}
    order=[]
    for sg in range(-3,NWIN+3):
        seg=[by.pop((u,sg+off)) for u,off in tpl if (u,sg+off) in by]
        if seg: order.append(seg)
    return order, [i for i in ins if (i.uid,i.win) in by]

def fin_segments(ref, order, cfg):
    flat=[i for sg in order for i in sg]
    assert len(flat)==len(ref) and check_order(ref,flat)
    flat=[]
    for n,sg in enumerate(order):
        x=I(f"@seg{n}",'X'); x.preds={}; x.tag='seg'; flat.append(x); flat+=sg
    fin,tot=finalize(flat)
    segs=[]
    for i in fin:
        if i.tag=='seg': segs.append([])
        else: segs[-1].append(i)
    if cfg.get('verbose'):
        print("segment start slots",[i.t for i in fin if i.tag=='seg'],"total",tot, file=sys.stderr)
        from collections import Counter
        print(Counter(i.kind+(':'+i.tag if i.tag else '') for i in segs[len(segs)//2]), file=sys.stderr)
    return segs

def main_stream(cfg):
    g=Gen(cfg)
    for i in range(0,NWIN+1): g.body(i)
    order,rest=segments(g.ins, template(cfg))
    return fin_segments(g.ins, order, cfg)

def loop_text(s0,s1,label,em,pft):
    out=[]; s1c=list(s1); s1=list(s1)
    def mk(text,t):
        x=I(text,'s'); x.t=t; return x
    pos=len(s1)
    for k in range(len(s1)-1,0,-1):
        if 'scc' in s1[k].wr or 'scc' in s1[k].rd: break
        if s1[k-1].kind=='M' and s1[k-1].mt!='K' and s1[k].kind not in 'sB': pos=k; break
    s1.insert(pos,mk(f"s_sub_u32 {txt(sCNT)}, {txt(sCNT)}, 1",s1[pos-1].t+1))
    s1.append(mk(f"s_cbranch_scc0 {label}_loop",s1[-1].t+1))
    out.append(em(s0))
    if pft:
        for i in s1c:
            if 'scc' in i.rd: raise SystemExit("scc live at mid-loop")
            if 'scc' in i.wr: break
        seen=set(); dead=None
        for i in s1c:
            seen|=set(i.rd)
            dd=[r for r in i.wr if r[0]=='v' and r!='vcc' and r not in seen and i.kind in 'VR']
            if dd: dead=dd[0]; break
            seen|=set(i.wr)
        global PFTMP; PFTMP=dead
        out.append(f"s_cmp_eq_u32 {txt(sCNT)}, {pft}\ns_cbranch_scc1 {label}_pf\n{label}_nopf:")
    out.append(em(s1))
    out.append(f"{label}_tail:")
    return '\n'.join(out)

def emit_main(segs, label, st0='', st1='', fine=None, doalign=True, pad="", pft=None, after_t0=""):
    from align import align
    T=["\n".join(i.text for i in sg) for sg in segs]
    n=len(T)
    per=[k for k in range(n-2) if T[k]==T[k+2]]
    a0=per[0]; drain=''
    core=lambda sg:[i.text for i in sg if i.tag not in ('wait','nop')]
    vmw=lambda sg:[int(x) for i in sg if i.tag=='wait' for x in re.findall(r'vmcnt\((\d+)\)',i.text)]
    if a0>0 and core(segs[a0-1])==core(segs[a0+1]):
        va,vb=vmw(segs[a0-1]),vmw(segs[a0+1])
        if len(va)==len(vb)==1 and vb[0]<=va[0]:
            a0-=1; per=[a0]+per; segs=list(segs); segs[a0]=segs[a0+2]; drain="s_waitcnt lgkmcnt(0)\ns_nop 6\n"
    b0=a0
    while b0 in per: b0+=1
    b0+=2
    reps=(b0-a0)//2
    def mk(text,t):
        x=I(text,'s'); x.t=t; return x
    def em(sg): return "\n".join(align(sg)) if doalign else "\n".join(i.text for i in sg)
    out=[".p2align 3"]
    for k in range(a0): out.append(em(segs[k]))
    out.append(f"{drain}{st0}s_mov_b32 {txt(sCNT)}, {reps-1}\n.p2align 6\n{pad}{label}_loop:")
    s0=list(segs[a0]); s1=list(segs[a0+1])
    if fine:
        t0=s0[0].t; L=[]; k=0; info=[]
        for n_,i in enumerate(s0):
            L.append(i)
            if k<len(fine) and i.t-t0>=fine[k] and i.kind=='M' and i.mt!='K' and n_+1<len(s0) and s0[n_+1].kind not in 'sB':
                L.append(mk(f"s_memtime s[{74+2*k}:{75+2*k}]",i.t+1)); info.append((i.t-t0,i.uid)); k+=1
        print("FINE",info,file=sys.stderr)
        out.append("; FINE "+" ".join(str(4*x[0]) for x in info))
        s0=L
    out.append(loop_text(s0,s1,label,em,pft))
    if st1: out.append(st1+".p2align 3")
    for sg in (segs[a0], segs[a0+2*reps]):
        for i in sg:
            if 'scc' in i.rd: raise SystemExit("scc live across loop edge")
            if 'scc' in i.wr: break
    for k in range(a0+2*reps,n):
        out.append(em(segs[k]))
        if k==n-2 and after_t0: out.append(after_t0)
    print(f"{label}: {n} segments, peel {a0}, loop x{reps}, tail {n-a0-2*reps}", file=sys.stderr)
    return "\n".join(out)

if __name__=="__main__":
    cfg=dict(CFG); cfg['verbose']=True
    if len(sys.argv)>1: load_tuned(cfg,sys.argv[1])
    segs=main_stream(cfg)
    s=emit_main(segs,"F")
    open("main.txt","w").write("\n".join(f"{i.t:6d} {i.uid[0] if i.uid else '':6s} {i.text}" for i in segs[10]))
```
